```python
import torch

def _softmax(x, axis=-1):
    return torch.softmax(x, dim=axis)
def _gelu(x):
    return torch.nn.functional.gelu(x, approximate="tanh")
def _silu(x):
    return torch.nn.functional.silu(x)
def _sigmoid(x):
    return torch.sigmoid(x)
def _layernorm(x, axis=-1, eps=1e-5):
    m = x.mean(dim=axis, keepdim=True)
    v = x.var(dim=axis, keepdim=True, unbiased=False)
    return (x - m) / torch.sqrt(v + eps)
def _scatter_add(tgt, idx, src, axis=0):
    return tgt.clone().index_add_(axis, idx, src)
def _segment_sum(src, seg, n):
    out = torch.zeros((n,) + src.shape[1:], dtype=src.dtype)
    return out.index_add_(0, seg, src)
def _pad(x, pw):
    flat = tuple(v for pair in reversed(pw) for v in pair)
    return torch.nn.functional.pad(x, flat)

kernel_name = 'standalone__attention_interact_autoint__recsys'

def setup_inputs():

    _w = (lambda a: (lambda t: t.to(torch.bfloat16) if t.is_floating_point() else t)(torch.as_tensor(a)))
    B, F = 1024, 100
    D = max(2, (64 // 2) * 2)
    H = 2
    Dh = D // H
    return {
        "e": _w((lambda *s: torch.randn(*s, dtype=torch.bfloat16) * 0.05)(B, F, D).to(float)),
        "wq": _w((lambda *s: torch.randn(*s, dtype=torch.bfloat16) * 3.2)(H, D, Dh).to(float)),
        "wk": _w((lambda *s: torch.randn(*s, dtype=torch.bfloat16) * 3.2)(H, D, Dh).to(float)),
        "wv": _w((lambda *s: torch.randn(*s, dtype=torch.bfloat16) * 0.05)(H, D, Dh).to(float)),
        "wres": _w((lambda *s: torch.randn(*s, dtype=torch.bfloat16) * 0.05)(D, D).to(float)),
    }

def reference(e, wq, wk, wv, wres):
    H, D, Dh = wq.shape[0], wq.shape[1], wq.shape[2]
    B, F = e.shape[0], e.shape[1]
    q = torch.einsum('bfd,hdk->bhfk', e, wq)
    k = torch.einsum('bfd,hdk->bhfk', e, wk)
    v = torch.einsum('bfd,hdk->bhfk', e, wv)
    scale = float(Dh) ** -0.5
    scores = torch.einsum('bhfk,bhgk->bhfg', q, k) * scale
    attn = _softmax(scores, axis=-1)
    attn = (lambda x, dt: x.to(dt))(attn, v.dtype)
    ctx = torch.einsum('bhfg,bhgk->bhfk', attn, v)
    ctx = (lambda x, *d: x.permute(*d))(ctx, 0, 2, 1, 3).reshape(B, F, H * Dh)
    res = torch.einsum('bfd,de->bfe', e, wres)
    out = ctx + res
    mask = (lambda x, dt: x.to(dt))(out > 0, out.dtype)
    return out * mask
```

```python
import re

TRANS = ('v_exp_f32', 'v_log_f32', 'v_rcp_f32', 'v_rsq_f32', 'v_sqrt_f32', 'v_sin_f32', 'v_cos_f32')

def parse_regs(tok, pfx):
    tok = tok.strip()
    tok = tok.lstrip('-')
    if tok.startswith('abs(') or tok.startswith('|'):
        tok = tok.replace('abs(', '').replace(')', '').replace('|', '')
    m = re.fullmatch(pfx + r'(\d+)', tok)
    if m: return [int(m.group(1))]
    m = re.fullmatch(pfx + r'\[(\d+):(\d+)\]', tok)
    if m: return list(range(int(m.group(1)), int(m.group(2)) + 1))
    return []

class Ins:
    def __init__(self, text):
        self.text = text.strip()
        t = self.text.split(';')[0].strip()
        self.is_label = t.endswith(':')
        parts = t.split(None, 1)
        self.op = parts[0] if parts else ''
        rest = parts[1] if len(parts) > 1 else ''
        ops = [o.strip() for o in rest.split(',')] if rest else []
        self.mods = ''
        if ops:
            sp = ops[-1].split(None, 1)
            if len(sp) > 1:
                ops[-1] = sp[0]; self.mods = sp[1]
        self.ops = ops
        op = self.op
        self.vr, self.vw, self.sr, self.sw = set(), set(), set(), set()
        self.srcC = set(); self.srcAB = set()
        self.kind = 'other'
        V = lambda o: parse_regs(o, 'v')
        S = lambda o: parse_regs(o, 's') + ([106, 107] if o == 'vcc' else []) + ([124] if o == 'm0' else []) + ([126,127] if o == 'exec' else [])
        if self.is_label:
            self.kind = 'label'
        elif op.startswith('v_mfma'):
            self.kind = 'mfma'
            self.passes = 8 if '32x32x16' in op or '32x32x8' in op else 4
            self.vw = set(V(ops[0])); self.srcAB = set(V(ops[1]) + V(ops[2])); self.srcC = set(V(ops[3]))
            self.vr = self.srcAB | self.srcC
            self.dlist = V(ops[0]); self.clist = V(ops[3])
        elif op.startswith('v_cmp'):
            self.kind = 'valu'
            self.sw = set(S(ops[0]))
            for o in ops[1:]: self.vr |= set(V(o)); self.sr |= set(S(o))
        elif op.startswith('v_readfirstlane') or op.startswith('v_readlane'):
            self.kind = 'valu'; self.readlane = True
            self.sw = set(S(ops[0])); self.vr = set(V(ops[1]))
        elif op.startswith('v_permlane'):
            self.kind = 'valu'; self.permlane = True
            self.vw = set(V(ops[0]) + V(ops[1])); self.vr = set(self.vw)
        elif op.startswith('v_'):
            self.kind = 'trans' if op.replace('_e32','').replace('_e64','') in TRANS else 'valu'
            self.vw = set(V(ops[0]))
            for o in ops[1:]: self.vr |= set(V(o)); self.sr |= set(S(o))
            if op.startswith('v_fmac') or op.startswith('v_pk_fmac') or 'dst_unused:UNUSED_PRESERVE' in self.mods: self.vr |= self.vw
            if op.startswith('v_cndmask') and len(ops) == 3: self.sr |= {106,107}
            if '_dpp' in op or 'row_' in self.mods or 'quad_perm' in self.mods:
                self.dpp = True; self.vr |= self.vw
        elif op.startswith('buffer_load') or op.startswith('global_load'):
            self.kind = 'vmload'
            if 'lds' in self.mods.split() or op.startswith('global_load_lds'):
                for o in ops: self.vr |= set(V(o)); self.sr |= set(S(o))
                self.sr |= {124}; self.ldsdma = True
            else:
                self.vw = set(V(ops[0]))
                if 'd16' in op: self.vr |= self.vw
                for o in ops[1:]: self.vr |= set(V(o)); self.sr |= set(S(o))
        elif op.startswith('buffer_store') or op.startswith('global_store'):
            self.kind = 'vmstore'
            for o in ops: self.vr |= set(V(o)); self.sr |= set(S(o))
            self.wide = ('x4' in op or 'x3' in op)
            self.data = set(V(ops[0])) if op.startswith('buffer') else set(V(ops[1]))
        elif op.startswith('ds_read') or op.startswith('ds_bpermute') or op.startswith('ds_swizzle') or op.startswith('ds_permute'):
            self.kind = 'dsread'
            self.vw = set(V(ops[0]))
            for o in ops[1:]: self.vr |= set(V(o))
        elif op.startswith('ds_write'):
            self.kind = 'dswrite'
            for o in ops: self.vr |= set(V(o))
        elif op.startswith('s_load') or op.startswith('s_memtime') or op.startswith('s_memrealtime'):
            self.kind = 'smem'
            self.sw = set(S(ops[0]))
            for o in ops[1:]: self.sr |= set(S(o))
        elif op.startswith('s_nop'):
            self.kind = 'nop'; self.n = int(ops[0], 0) + 1
        elif op.startswith('s_waitcnt') or op in ('s_barrier', 's_endpgm', 's_setprio', 's_sleep'):
            self.kind = 'sync'
        elif op.startswith('s_cbranch') or op.startswith('s_branch') or op.startswith('s_setpc') or op.startswith('s_swappc'):
            self.kind = 'branch'
        elif op.startswith('s_'):
            self.kind = 'salu'
            if op.startswith('s_cmp') or op.startswith('s_bitcmp'):
                for o in ops: self.sr |= set(S(o))
            else:
                self.sw = set(S(ops[0]))
                for o in ops[1:]: self.sr |= set(S(o))
                if 'saveexec' in op: self.sw |= {126,127}
    def isvalu(self): return self.kind in ('valu', 'trans')
    def states(self):
        if self.kind == 'nop': return self.n
        if self.kind == 'label' or not self.op or self.op.startswith('.') or self.op.startswith(';'): return 0
        return 1

def required_gap(p, c):
    g = 0
    if p.isvalu():
        if c.kind == 'mfma' and (p.vw & c.vr): g = max(g, 2)
        if p.kind == 'trans' and c.kind == 'valu' and (p.vw & (c.vr | c.vw)): g = max(g, 1)
        if p.kind == 'trans' and c.kind in ('vmstore', 'dswrite', 'vmload', 'dsread') and (p.vw & c.vr): g = max(g, 1)
        if getattr(c, 'permlane', False) and (p.vw & c.vr): g = max(g, 2)
        if getattr(c, 'dpp', False) and (p.vw & c.vr): g = max(g, 2)
        if getattr(c, 'readlane', False) and (p.vw & c.vr): g = max(g, 1)
        if p.sw:
            if c.isvalu() and (p.sw & c.sr): g = max(g, 4 if getattr(c,'readlane',False) else 2)
            if c.kind in ('vmload', 'vmstore') and (p.sw & c.sr): g = max(g, 5)
            if c.kind in ('salu','branch','smem') and (p.sw & c.sr or c.kind=='branch'): g = max(g, 1)
            if ({126,127} & p.sw):
                if c.kind == 'mfma': g = max(g, 4)
                if getattr(c, 'dpp', False): g = max(g, 5)
                if getattr(c, 'permlane', False) or getattr(c, 'readlane', False): g = max(g, 4)
        if 'op_sel' in p.mods or 'sel:' in p.mods:
            if c.isvalu() and (p.vw & (c.vr | c.vw)): g = max(g, 1)
    if p.kind == 'mfma':
        P = p.passes
        full = {2: 5, 4: 8, 8: 12, 16: 20}[P]
        if c.kind == 'mfma':
            if p.vw & c.srcAB: g = max(g, full)
            if p.vw & c.srcC:
                if c.clist == p.dlist and c.op == p.op: g = max(g, 2 if P == 2 else 0)
                else: g = max(g, {2: 4, 4: 6, 8: 10, 16: 18}[P])
            elif p.vw & c.vw:
                if not (c.passes >= P): g = max(g, full)
        elif c.isvalu() or c.kind in ('vmload', 'vmstore', 'dsread', 'dswrite'):
            if p.vw & (c.vr | c.vw): g = max(g, full)
            if c.isvalu() and (p.srcC & c.vw): g = max(g, {2: 1, 4: 3, 8: 7, 16: 15}[P])
            if c.kind in ('vmload','dsread') and (p.srcC & c.vw): g = max(g, {2: 1, 4: 3, 8: 7, 16: 15}[P])
    if p.kind == 'vmstore' and p.wide:
        if (p.data & c.vw): g = max(g, 2 if c.isvalu() or c.kind=='mfma' else 1)
    if p.kind == 'salu' and 124 in p.sw and getattr(c, 'ldsdma', False): g = max(g, 1)
    if p.kind == 'salu' and ({126,127} & p.sw):
        pass
    return g

class Asm:
    def __init__(self):
        self.items = []
    def __call__(self, text):
        for line in text.split('\n'):
            if line.strip(): self.items.append(Ins(line))
    def extend(self, lst):
        for t in lst: self(t)
    def finalize(self, auto_wait=True):
        out = []
        vm = []
        lg = []
        nops = 0
        for ins in self.items:
            if auto_wait:
                touch = ins.vr | ins.vw
                need_vm = None; need_lg = None
                for k, regs in enumerate(vm):
                    if regs & touch: need_vm = len(vm) - 1 - k
                for k, (regs, sregs) in enumerate(lg):
                    if (regs & touch): need_lg = len(lg) - 1 - k
                    if sregs and (sregs & (ins.sr | ins.sw)): need_lg = 0
                if need_lg is not None and any(s for _, s in lg): need_lg = 0
                if need_vm is not None or need_lg is not None:
                    w = 's_waitcnt'
                    if need_vm is not None:
                        w += f' vmcnt({min(need_vm,63)})'; vm = vm[len(vm) - need_vm:] if need_vm else []
                    if need_lg is not None:
                        w += f' lgkmcnt({min(need_lg,15)})'; lg = lg[len(lg) - need_lg:] if need_lg else []
                    out.append(Ins(w))
                if ins.op == 's_waitcnt':
                    m = re.search(r'vmcnt\((\d+)\)', ins.text)
                    if m:
                        n = int(m.group(1)); vm = vm[len(vm) - n:] if n and n < len(vm) else ([] if n == 0 else vm)
                    m = re.search(r'lgkmcnt\((\d+)\)', ins.text)
                    if m:
                        n = int(m.group(1)); lg = lg[len(lg) - n:] if n and n < len(lg) else ([] if n == 0 else lg)
            need = 0; dist = 0
            for p in reversed(out[-40:]):
                g = required_gap(p, ins)
                if g > dist: need = max(need, g - dist)
                dist += p.states()
                if dist >= 24: break
            while need > 0:
                k = min(need, 16); out.append(Ins(f's_nop {k-1}')); need -= k; nops += k
            out.append(ins)
            if ins.kind in ('vmload', 'vmstore'): vm.append(set(ins.vw))
            if ins.kind in ('dsread', 'dswrite'): lg.append((set(ins.vw), set()))
            if ins.kind == 'smem': lg.append((set(), set(ins.sw) or {999}))
            if lg and len(lg) > 15: pass
        self.nops = nops
        return out
    def text(self, **kw):
        o = self.finalize(**kw)
        return '\n'.join(('' if i.is_label else '    ') + i.text for i in o) + '\n'

def interleave(main, fill, ratio=None):
    out = []
    n, m = len(main), len(fill)
    if m == 0: return list(main)
    if n == 0: return list(fill)
    j = 0
    for i, x in enumerate(main):
        while j < m and j * n <= i * m:
            out.append(fill[j]); j += 1
        out.append(x)
    out += fill[j:]
    return out


def issue_cost(ins):
    if ins.kind == 'mfma': return 8
    if ins.kind == 'trans' or getattr(ins, 'permlane', False): return 8
    if ins.kind == 'valu': return 4
    if ins.kind in ('vmload', 'vmstore'): return 8
    if ins.kind in ('dsread', 'dswrite'): return 4
    if ins.kind == 'nop': return 4 * ins.n
    return 4

def latency(p, c):
    if p.kind == 'mfma':
        if c.kind == 'mfma' and (p.vw & c.srcC) and c.clist == p.dlist and c.op == p.op and not (p.vw & c.srcAB):
            return p.passes * 4
        if p.vw & (c.vr | c.vw): return p.passes * 4 + 20
        return 8
    if p.kind == 'dsread' and (p.vw & (c.vr | c.vw)): return 128
    if p.kind == 'vmload' and (p.vw & (c.vr | c.vw)): return 600
    if p.kind == 'trans' and (p.vw & c.vr): return 12
    return issue_cost(p)

def schedule(texts, prio=None, window=400, verbose=False, mfma_first=True, tail_ctx=None):
    ops = [Ins(t) if isinstance(t, str) else t for t in texts]
    n = len(ops)
    preds = [[] for _ in range(n)]
    lastw = {}; readers = {}
    last_ds = None; last_vm = None
    def regs(i, w):
        o = ops[i]
        if w: return [('v', r) for r in o.vw] + [('s', r) for r in o.sw]
        return [('v', r) for r in o.vr] + [('s', r) for r in o.sr]
    for i, o in enumerate(ops):
        ps = set()
        for r in regs(i, False):
            if r in lastw: ps.add(lastw[r])
        for r in regs(i, True):
            if r in lastw: ps.add(lastw[r])
            for j in readers.get(r, []): ps.add(j)
        if o.kind in ('dsread', 'dswrite'):
            if last_ds is not None: ps.add(last_ds)
            last_ds = i
        if o.kind in ('vmload', 'vmstore'):
            if last_vm is not None: ps.add(last_vm)
            last_vm = i
        assert o.kind not in ('branch', 'label', 'sync'), o.text
        ps.discard(i)
        preds[i] = sorted(ps)
        for r in regs(i, True):
            lastw[r] = i; readers[r] = []
        for r in regs(i, False):
            readers.setdefault(r, []).append(i)
    succs = [[] for _ in range(n)]
    for i in range(n):
        for p in preds[i]: succs[p].append(i)
    npred = [len(p) for p in preds]
    done_t = [None] * n; done_idx = [None] * n
    ready = [i for i in range(n) if npred[i] == 0]
    t = 0; pipe_free = 0; idx = 0
    order = []; stall = 0
    if prio is None: prio = list(range(n))
    while len(order) < n:
        lo = min(ready, key=lambda i: prio[i])
        cands = []
        for i in ready:
            if prio[i] > prio[lo] + window: continue
            rt = 0; ok_idx = True; short = 0
            for p in preds[i]:
                rt = max(rt, done_t[p] + latency(ops[p], ops[i]))
                g = required_gap(ops[p], ops[i])
                short = max(short, g - (idx - done_idx[p] - 1))
            if ops[i].kind == 'mfma': rt = max(rt, pipe_free)
            rt = max(rt, t + 4 * max(short, 0))
            cands.append((rt, i))
        now = [(i) for rt, i in cands if rt <= t]
        if now:
            mf = [i for i in now if ops[i].kind == 'mfma']
            if mf and mfma_first: pick = min(mf, key=lambda i: prio[i])
            else: pick = min(now, key=lambda i: prio[i])
        else:
            rt, pick = min(cands, key=lambda x: (x[0], prio[x[1]]))
            stall += rt - t
            idx += (rt - t + 3) // 4 if False else 0
            t = rt
        o = ops[pick]
        done_t[pick] = t; done_idx[pick] = idx
        if o.kind == 'mfma': pipe_free = t + o.passes * 4
        t += issue_cost(o); idx += 1
        order.append(pick); ready.remove(pick)
        for s in succs[pick]:
            npred[s] -= 1
            if npred[s] == 0: ready.append(s)
    if verbose: print(f'schedule: {n} ops, est {t} cycles, stall {stall}')
    return [ops[i].text for i in order]
```

```python
import sys, math, struct
from asmlib import *

HEADER = """; Kernarg layout for this problem (64 bytes, ptrs only, base s[0:1]):
"""
KNAME = 'standalone__attention_interact_autoint__recsys_kernel'

def f32bits(x): return struct.unpack('<I', struct.pack('<f', x))[0]
def vr(b, n): return f'v[{b}:{b+n-1}]' if n > 1 else f'v{b}'

def gen(opts):
    A = Asm()
    vLane, vI, vHf, vT0, vT1 = 1, 2, 3, 4, 5
    vOffE, vOffT, vWa, vWb = 6, 7, 8, 9
    vOffO, vOffOT, vPW, vPWT, vPR, vChk = 10, 11, 12, 13, 14, 15
    E = [16, 32, 48]; ET = 64
    WK, WV, WQ, WR = 80, 96, 112, 128
    K = [144, 160, 176]; Q = [152, 168, 184]
    KT, QT = 192, 200
    V = [208, 216, 224]
    VT = 232
    PT = 234
    RT = 236
    TA = 240
    RES = [ET, E[0], E[1]]
    S = [WK, WV, WQ]
    CTX = [WR, E[2]]
    ONES = 240
    SGT = 244
    L = [248, 252]
    sW, sB, sH = 16, 17, 18
    SRD_E, SRD_O, SRD_W = 20, 24, 28
    s4096, s8192, sC, sSafe, sLO, sStep, sStep2, sStep3 = 32, 33, 34, 35, 36, 37, 38, 39
    LDS_W = 0
    LDS_Z = 32768
    LDS_P = 32768 + 256
    lds_total = LDS_P + 8 * 1024

    c_scale = math.log2(math.e) / math.sqrt(32.0)

    A(f'{KNAME}:')
    A('s_cmp_ge_u32 s2, 256')
    A('s_cbranch_scc1 L_end')
    A('s_load_dwordx8 s[4:11], s[0:1], 0')
    A('s_load_dwordx4 s[12:15], s[0:1], 32')
    A(f'v_lshrrev_b32 v{vT0}, 6, v0')
    A(f'v_and_b32 v{vLane}, 63, v0')
    A(f'v_readfirstlane_b32 s{sW}, v{vT0}')
    A(f'v_and_b32 v{vI}, 31, v0')
    A(f'v_bfe_u32 v{vHf}, v0, 5, 1')
    A(f's_mov_b32 s{s4096}, 4096')
    A(f's_mov_b32 s{s8192}, 8192')
    A(f's_mov_b32 s{sC}, 0x{f32bits(c_scale):08x}')
    A(f's_mov_b32 s{sSafe}, 0')
    A(f's_mov_b32 s{sLO}, 0x{(127-40)<<23:08x}')
    A(f's_lshr_b32 s{sB}, s{sW}, 1')
    A(f's_and_b32 s{sH}, s{sW}, 1')
    A(f'v_lshlrev_b32 v{vOffE}, 7, v{vI}')
    A(f'v_lshl_add_u32 v{vOffE}, v{vHf}, 4, v{vOffE}')
    A(f's_cmp_eq_u32 s{sB}, 3')
    A(f's_cselect_b32 s{sStep}, 1024, 0')
    A(f's_cselect_b32 s{sStep2}, 2048, 0')
    A(f's_cselect_b32 s{sStep3}, 3072, 0')
    A(f's_cselect_b32 s40, 64, 4096')
    A(f's_cselect_b32 s41, 7, 6')
    A(f's_mul_i32 s40, s40, s{sH}')
    A(f'v_lshrrev_b32 v{vT0}, 2, v{vLane}')
    A(f'v_lshlrev_b32 v{vT0}, s41, v{vT0}')
    A(f'v_and_b32 v{vT1}, 3, v{vLane}')
    A(f'v_lshl_add_u32 v{vT0}, v{vT1}, 4, v{vT0}')
    A(f'v_add_u32 v{vT0}, s40, v{vT0}')
    A(f's_lshl_b32 m0, s{sW}, 12')
    A('s_waitcnt lgkmcnt(0)')
    A(f's_cmp_eq_u32 s{sB}, 1')
    A(f's_cselect_b64 s[{SRD_W}:{SRD_W+1}], s[8:9], s[6:7]')
    A(f's_cmp_eq_u32 s{sB}, 2')
    A(f's_cselect_b64 s[{SRD_W}:{SRD_W+1}], s[10:11], s[{SRD_W}:{SRD_W+1}]')
    A(f's_cmp_eq_u32 s{sB}, 3')
    A(f's_cselect_b64 s[{SRD_W}:{SRD_W+1}], s[12:13], s[{SRD_W}:{SRD_W+1}]')
    A(f's_mov_b32 s{SRD_W+2}, 8192')
    A(f's_mov_b32 s{SRD_W+3}, 0x20000')
    for k, so in enumerate(['0', f's{sStep}', f's{sStep2}', f's{sStep3}']):
        A(f'buffer_load_dwordx4 v{vT0}, s[{SRD_W}:{SRD_W+3}], {so} offen offset:{k*1024} lds')
    A(f's_lshl_b32 s3, s2, 2')
    A(f's_add_u32 s{sB}, s{sB}, s3')
    A(f's_mul_i32 s19, s{sB}, 12800')
    A(f's_add_u32 s{SRD_E}, s4, s19')
    A(f's_addc_u32 s{SRD_E+1}, s5, 0')
    A(f's_mov_b32 s{SRD_E+2}, 12800')
    A(f's_mov_b32 s{SRD_E+3}, 0x20000')
    A(f's_add_u32 s{SRD_O}, s14, s19')
    A(f's_addc_u32 s{SRD_O+1}, s15, 0')
    A(f's_mov_b32 s{SRD_O+2}, 12800')
    A(f's_mov_b32 s{SRD_O+3}, 0x20000')
    A(f'v_bfe_u32 v{vT0}, v{vI}, 3, 1')
    A(f'v_and_b32 v{vT1}, 1, v{vI}')
    A(f'v_lshl_add_u32 v{vT0}, v{vT0}, 1, v{vT1}')
    A(f'v_lshlrev_b32 v{vOffT}, 7, v{vT0}')
    A(f'v_lshl_add_u32 v{vOffT}, v{vHf}, 4, v{vOffT}')
    A(f'v_add_u32 v{vOffT}, {96*128}, v{vOffT}')
    A(f'v_lshrrev_b32 v{vT1}, 2, v{vI}')
    A(f'v_xor_b32 v{vT1}, v{vT1}, v{vI}')
    A(f'v_and_b32 v{vT1}, 4, v{vT1}')
    A(f'v_and_or_b32 v{vT1}, v{vI}, 2, v{vT1}')
    A(f'v_cmp_eq_u32 vcc, 0, v{vT1}')
    A(f'v_mov_b32 v{vT1}, 0x100000')
    A(f'v_cndmask_b32 v{vOffT}, v{vT1}, v{vOffT}, vcc')
    A(f's_lshl_b32 s42, s{sW}, 10')
    A(f's_add_u32 s42, s42, {LDS_P}')
    A(f'v_lshlrev_b32 v{vPR}, 8, v{vT0}')
    A(f'v_lshl_add_u32 v{vPR}, v{vHf}, 4, v{vPR}')
    A(f'v_add_u32 v{vPR}, s42, v{vPR}')
    A(f'v_mov_b32 v{vT1}, {LDS_Z}')
    A(f'v_cndmask_b32 v{vPR}, v{vT1}, v{vPR}, vcc')
    A('L_restart:')
    def eloads():
        for s in range(4):
            A(f'buffer_load_dwordx4 {vr(ET+4*s,4)}, v{vOffT}, s[{SRD_E}:{SRD_E+3}], 0 offen offset:{32*s}')
        for t, so in enumerate(['0', f's{s4096}', f's{s8192}']):
            for s in range(4):
                A(f'buffer_load_dwordx4 {vr(E[t]+4*s,4)}, v{vOffE}, s[{SRD_E}:{SRD_E+3}], {so} offen offset:{32*s}')
    eloads()
    A(f'v_mov_b32 v{VT+1}, 0')
    A(f'v_mov_b32 v{PT+1}, 0')
    A(f'v_lshlrev_b32 v{vT0}, 2, v{vLane}')
    A(f'ds_write_b32 v{vT0}, v{VT+1} offset:{LDS_Z}')
    A(f'v_bfe_u32 v{vT0}, v{vLane}, 2, 2')
    A(f'v_lshl_add_u32 v{vT0}, v{vHf}, 3, v{vT0}')
    A(f'v_lshlrev_b32 v{vT0}, 6, v{vT0}')
    A(f's_lshl_b32 s43, s{sH}, 12')
    A(f'v_add_u32 v{vT0}, s43, v{vT0}')
    A(f'v_bfe_u32 v{vT1}, v{vLane}, 4, 1')
    A(f'v_lshl_add_u32 v{vT0}, v{vT1}, 5, v{vT0}')
    A(f'v_and_b32 v{vT1}, 3, v{vLane}')
    A(f'v_lshl_add_u32 v{vWa}, v{vT1}, 3, v{vT0}')
    A(f'v_and_b32 v{vT1}, 1, v{vLane}')
    A(f'v_lshl_add_u32 v{vWb}, v{vT1}, 4, v{vT0}')
    A(f'v_bfe_u32 v{vT1}, v{vLane}, 1, 1')
    A(f'v_lshl_add_u32 v{vWb}, v{vT1}, 3, v{vWb}')
    A(f's_lshl_b32 s43, s{sH}, 6')
    A(f'v_add_u32 v{vOffO}, s43, v{vOffE}')
    A(f'v_and_b32 v{vT0}, 0x13, v{vI}')
    A(f'v_bfe_u32 v{vT1}, v{vI}, 2, 1')
    A(f'v_lshl_add_u32 v{vT0}, v{vT1}, 3, v{vT0}')
    A(f'v_bfe_u32 v{vT1}, v{vI}, 3, 1')
    A(f'v_lshl_add_u32 v{vT0}, v{vT1}, 2, v{vT0}')
    A(f'v_lshlrev_b32 v{vT0}, 1, v{vT0}')
    A(f'v_lshl_add_u32 v{vOffOT}, v{vHf}, 8, v{vT0}')
    A(f'v_add_u32 v{vOffOT}, s43, v{vOffOT}')
    A(f'v_add_u32 v{vOffOT}, {96*128}, v{vOffOT}')
    A(f'v_lshl_add_u32 v{vPW}, v{vHf}, 9, v{vT0}')
    A(f'v_add_u32 v{vPW}, s42, v{vPW}')
    A(f'v_bfe_u32 v{vT0}, v{vI}, 3, 1')
    A(f'v_and_b32 v{vT1}, 3, v{vI}')
    A(f'v_lshl_add_u32 v{vT0}, v{vT0}, 3, v{vT1}')
    A(f'v_lshlrev_b32 v{vT0}, 1, v{vT0}')
    A(f'v_add_u32 v{vT0}, 192, v{vT0}')
    A(f'v_and_b32 v{vT1}, 0x14, v{vI}')
    A(f'v_cmp_eq_u32 vcc, 0, v{vT1}')
    A(f'v_mov_b32 v{vT1}, 240')
    A(f'v_cndmask_b32 v{vT0}, v{vT1}, v{vT0}, vcc')
    A(f'v_lshl_add_u32 v{vPWT}, v{vHf}, 9, v{vT0}')
    A(f'v_add_u32 v{vPWT}, s42, v{vPWT}')
    A(f'v_mov_b32 v{vChk}, 0')
    A(f's_cmp_lg_u32 s{sSafe}, 0')
    A('s_cbranch_scc1 L_nobar')
    A('s_waitcnt vmcnt(16) lgkmcnt(0)')
    A('s_barrier')
    A('L_nobar:')
    pro = []
    for (Wb, mat, va) in ((WK, 1, vWa), (WV, 2, vWb), (WQ, 0, vWa), (WR, 3, vWb)):
        for s in range(4):
            for z in range(2):
                pro.append(f'ds_read_b64_tr_b16 {vr(Wb+4*s+2*z,2)}, v{va} offset:{LDS_W + mat*8192 + s*1024 + z*256}')
    A.extend(pro)

    M32 = 'v_mfma_f32_32x32x16_bf16'; M16 = 'v_mfma_f32_16x16x32_bf16'
    M32h = 'v_mfma_f32_32x32x8_bf16'; M16h = 'v_mfma_f32_16x16x16_bf16'
    def chain(op, D, nd, pairs, w=4):
        out = []
        for k, (a, b) in enumerate(pairs):
            cc = '0' if k == 0 else vr(D, nd)
            out.append(f'{op} {vr(D,nd)}, {vr(a,w)}, {vr(b,w)}, {cc}')
        return out
    def cvt(dst, src, n):
        return [f'v_cvt_pk_bf16_f32 v{dst+x}, v{src+2*x}, v{src+2*x+1}' for x in range(n)]
    def scale(src, n):
        return [f'v_mul_f32 v{src+x}, s{sC}, v{src+x}' for x in range(n)]

    P = []
    tb = K[1]
    P += chain(M32, TA, 16, [(WK+4*s, ET+4*s) for s in range(4)]) + cvt(KT, TA, 8)
    P += chain(M16, RT, 4, [(ET+4*s, WV+4*s) for s in range(4)]) + [f'v_cvt_pk_bf16_f32 v{VT}, v{RT}, v{RT+1}']
    P += chain(M32, tb, 16, [(WQ+4*s, ET+4*s) for s in range(4)]) + scale(tb, 16) + cvt(QT, tb, 8)
    P += chain(M16, RT, 4, [(ET+4*s, WR+4*s) for s in range(4)])
    temps = {0: (TA, K[1], K[2]), 1: (TA, K[2], TA), 2: (TA, WK, WV)}
    for t in range(3):
        ta, tb, tc = temps[t]
        P += chain(M32, ta, 16, [(WK+4*s, E[t]+4*s) for s in range(4)]) + cvt(K[t], ta, 8)
        P += chain(M32, tb, 16, [(E[t]+4*s, WV+4*s) for s in range(4)]) + cvt(V[t], tb, 8)
        P += chain(M32, tc, 16, [(WQ+4*s, E[t]+4*s) for s in range(4)]) + scale(tc, 16) + cvt(Q[t], tc, 8)
        P += chain(M32, RES[t], 16, [(WR+4*s, E[t]+4*s) for s in range(4)])
    P += [f'v_lshrrev_b32 v{vT0}, 2, v{vLane}', f'v_xor_b32 v{vT0}, v{vT0}, v{vLane}', f'v_and_b32 v{vT0}, 4, v{vT0}',
          f'v_cmp_eq_u32 vcc, 0, v{vT0}', f'v_mov_b32 v{vT1}, 0x3f803f80',
          f'v_cndmask_b32 v{ONES}, 0, v{vT1}, vcc'] + [f'v_mov_b32 v{ONES+k}, v{ONES}' for k in (1, 2, 3)]

    def body(safe):
        X = []
        def smm(t, g):
            if g < 3: return chain(M32, S[g], 16, [(K[g]+4*u, Q[t]+4*u) for u in range(2)])
            return chain(M16, SGT, 4, [(KT+4*u, Q[t]+4*u) for u in range(2)])
        for t in range(3):
            ctx = CTX[t & 1]; l = L[t & 1]
            for g in range(4): X += smm(t, g)
            if safe:
                m = vT0
                regs = [S[g]+r for g in range(3) for r in range(16)] + [SGT, SGT+1]
                X.append(f'v_max_f32 v{m}, v{regs[0]}, v{regs[1]}')
                for k in range(2, 50, 2): X.append(f'v_max3_f32 v{m}, v{regs[k]}, v{regs[k+1]}, v{m}')
                X.append(f'v_mov_b32 v{vT1}, v{m}')
                X.append(f'v_permlane32_swap_b32 v{m}, v{vT1}')
                X.append(f'v_max_f32 v{m}, v{m}, v{vT1}')
                for r in regs: X.append(f'v_sub_f32 v{r}, v{r}, v{m}')
            first = True
            for g in range(3):
                for u in range(2):
                    b = S[g] + 8*u
                    X += [f'v_exp_f32 v{b+r}, v{b+r}' for r in range(8)]
                    X += cvt(b, b, 4)
                    cc = '0' if first else vr(ctx, 16)
                    X.append(f'{M32} {vr(ctx,16)}, {vr(V[g]+4*u,4)}, {vr(b,4)}, {cc}')
                    cc = '0' if first else vr(l, 4)
                    X.append(f'{M16} {vr(l,4)}, {vr(ONES,4)}, {vr(b,4)}, {cc}')
                    first = False
            X += [f'v_exp_f32 v{SGT}, v{SGT}', f'v_exp_f32 v{SGT+1}, v{SGT+1}', f'v_cvt_pk_bf16_f32 v{PT}, v{SGT}, v{SGT+1}']
            X.append(f'{M32h} {vr(ctx,16)}, {vr(VT,2)}, {vr(PT,2)}, {vr(ctx,16)}')
            X.append(f'{M16h} {vr(l,4)}, {vr(ONES,2)}, {vr(PT,2)}, {vr(l,4)}')
            X.append(f'v_rcp_f32 v{l+1}, v{l}')
            if not safe:
                X.append(f'v_subrev_u32 v{l+2}, s{sLO}, v{l}')
                X.append(f'v_max_u32 v{vChk}, v{vChk}, v{l+2}')
            X += [f'v_fma_f32 v{ctx+r}, v{ctx+r}, v{l+1}, v{RES[t]+r}' for r in range(16)]
            X += cvt(ctx, ctx, 8)
            X += [f'v_pk_max_i16 v{ctx+r}, v{ctx+r}, 0' for r in range(8)]
            so = ['0', f's{s4096}', f's{s8192}'][t]
            for x in range(2):
                X.append(f'buffer_store_dwordx4 {vr(ctx+4*x,4)}, v{vOffO}, s[{SRD_O}:{SRD_O+3}], {so} offen offset:{32*x}')
        SF = RES[0]
        PS = RES[1]
        ONA = Q[0]
        CT = Q[1]
        LT = Q[1] + 4
        for g in range(4):
            kb = K[g] if g < 3 else KT
            X += chain(M16, SF+4*g, 4, [(QT+4*u, kb+4*u) for u in range(2)])
        if safe:
            X.append(f'v_and_b32 v{vT0}, 0x16, v{vI}')
            X.append(f'v_cmp_eq_u32 vcc, 0, v{vT0}')
            for r in range(2):
                m = vT0 if r == 0 else vT1
                X.append(f'v_cndmask_b32 v{m}, v{SF+r}, v{SF+12+r}, vcc')
                X.append(f'v_max3_f32 v{m}, v{m}, v{SF+r}, v{SF+4+r}')
                X.append(f'v_max_f32 v{m}, v{m}, v{SF+8+r}')
                for sh in (1, 2, 4, 8):
                    X.append(f'v_max_f32_dpp v{m}, v{m}, v{m} row_ror:{sh} row_mask:0xf bank_mask:0xf')
                X.append(f'v_mov_b32 v{SF+2}, v{m}')
                X.append(f'v_permlane16_swap_b32 v{m}, v{SF+2}')
                X.append(f'v_max_f32 v{m}, v{m}, v{SF+2}')
                for g in range(4):
                    X.append(f'v_sub_f32 v{SF+4*g+r}, v{SF+4*g+r}, v{m}')
                X.append(f'v_min_f32 v{SF+12+r}, 0, v{SF+12+r}')
        for g in range(4):
            b = SF + 4*g
            X += [f'v_exp_f32 v{b}, v{b}', f'v_exp_f32 v{b+1}, v{b+1}', f'v_cvt_pk_bf16_f32 v{b}, v{b}, v{b+1}']
            va, off = (vPW, 64*g) if g < 3 else (vPWT, 0)
            X.append(f'ds_write_b16 v{va}, v{b} offset:{off}')
            X.append(f'ds_write_b16_d16_hi v{va}, v{b} offset:{off+256}')
        for ks in range(6):
            X.append(f'ds_read_b128 {vr(PS+4*ks,4)}, v{vPR} offset:{32*ks}')
        X.append(f'ds_read_b64 {vr(PS+24,2)}, v{vPR} offset:192')
        X += [f'v_mov_b32 v{ONA+k}, 0x3f803f80' for k in range(5)] + [f'v_mov_b32 v{ONA+5}, 0']
        X += chain(M16, CT, 4, [(PS+4*ks, V[ks>>1]+4*(ks&1)) for ks in range(6)])
        X.append(f'{M16h} {vr(CT,4)}, {vr(PS+24,2)}, {vr(VT,2)}, {vr(CT,4)}')
        X += chain(M16, LT, 4, [(PS+4*ks, ONA) for ks in range(6)])
        X.append(f'{M16h} {vr(LT,4)}, {vr(PS+24,2)}, {vr(ONA+4,2)}, {vr(LT,4)}')
        for r in range(2):
            X.append(f'v_rcp_f32 v{LT+2+r}, v{LT+r}')
            if not safe:
                X.append(f'v_subrev_u32 v{LT+r}, s{sLO}, v{LT+r}')
                X.append(f'v_max_u32 v{vChk}, v{vChk}, v{LT+r}')
            X.append(f'v_fma_f32 v{CT+r}, v{CT+r}, v{LT+2+r}, v{RT+r}')
        X.append(f'v_cvt_pk_bf16_f32 v{CT}, v{CT}, v{CT+1}')
        X.append(f'v_pk_max_i16 v{CT}, v{CT}, 0')
        X.append(f'buffer_store_short v{CT}, v{vOffOT}, s[{SRD_O}:{SRD_O+3}], 0 offen')
        X.append(f'buffer_store_short_d16_hi v{CT}, v{vOffOT}, s[{SRD_O}:{SRD_O+3}], 0 offen offset:128')
        return X

    if opts.get('sched', True):
        A.extend(schedule(P, verbose=True, window=60))
    else:
        A.extend(P)
    A('s_nop 15')
    A(f's_cmp_lg_u32 s{sSafe}, 0')
    A('s_cbranch_scc1 L_safe')
    fast = body(False)
    if opts.get('sched', True): fast = schedule(fast, verbose=True, window=opts.get('window', 150))
    A.extend(fast)
    A(f's_mov_b32 s44, 0x{80<<23:08x}')
    A(f'v_cmp_le_u32 vcc, s44, v{vChk}')
    if opts.get('force_safe'): A('s_mov_b64 vcc, -1')
    A('s_nop 4')
    A('s_cbranch_vccz L_end')
    A(f's_mov_b32 s{sSafe}, 1')
    A('s_waitcnt vmcnt(0) lgkmcnt(0)')
    A('s_nop 15')
    A('s_branch L_restart')
    A('L_safe:')
    A('s_waitcnt vmcnt(0) lgkmcnt(0)')
    A('s_nop 15')
    A.extend(body(True))
    A('L_end:')
    A('s_endpgm')
    txt = A.text()
    print('nops inserted:', A.nops, file=sys.stderr)
    out = HEADER + f'; @launch grid=(256,1,1) block=(512,1,1) lds={lds_total}\n'
    out += '.amdgcn_target "amdgcn-amd-amdhsa--gfx950"\n.text\n'
    out += f'.globl {KNAME}\n.p2align 8\n.type {KNAME},@function\n'
    out += txt
    out += f""".section .rodata,"a"
.p2align 6
.amdhsa_kernel {KNAME}
  .amdhsa_next_free_vgpr 256
  .amdhsa_next_free_sgpr 64
  .amdhsa_accum_offset 256
  .amdhsa_group_segment_fixed_size 0
  .amdhsa_kernarg_size 64
  .amdhsa_user_sgpr_count 2
  .amdhsa_user_sgpr_kernarg_segment_ptr 1
  .amdhsa_system_sgpr_workgroup_id_x 1
.end_amdhsa_kernel
"""
    return out

if __name__ == '__main__':
    opts = {}
    outp = sys.argv[1]
    for a in sys.argv[2:]:
        k, v = a.split('=')
        opts[k] = int(v)
    open(outp, 'w').write(gen(opts))
```

```python
import re

TRANS = ('v_exp_f32', 'v_log_f32', 'v_rcp_f32', 'v_rsq_f32', 'v_sqrt_f32', 'v_sin_f32', 'v_cos_f32')

def parse_regs(tok, pfx):
    tok = tok.strip()
    tok = tok.lstrip('-')
    if tok.startswith('abs(') or tok.startswith('|'):
        tok = tok.replace('abs(', '').replace(')', '').replace('|', '')
    m = re.fullmatch(pfx + r'(\d+)', tok)
    if m: return [int(m.group(1))]
    m = re.fullmatch(pfx + r'\[(\d+):(\d+)\]', tok)
    if m: return list(range(int(m.group(1)), int(m.group(2)) + 1))
    return []

class Ins:
    def __init__(self, text):
        self.text = text.strip()
        t = self.text.split(';')[0].strip()
        self.is_label = t.endswith(':')
        parts = t.split(None, 1)
        self.op = parts[0] if parts else ''
        rest = parts[1] if len(parts) > 1 else ''
        ops = [o.strip() for o in rest.split(',')] if rest else []
        self.mods = ''
        if ops:
            sp = ops[-1].split(None, 1)
            if len(sp) > 1:
                ops[-1] = sp[0]; self.mods = sp[1]
        self.ops = ops
        op = self.op
        self.vr, self.vw, self.sr, self.sw = set(), set(), set(), set()
        self.srcC = set(); self.srcAB = set()
        self.kind = 'other'
        V = lambda o: parse_regs(o, 'v')
        S = lambda o: parse_regs(o, 's') + ([106, 107] if o == 'vcc' else []) + ([124] if o == 'm0' else []) + ([126,127] if o == 'exec' else [])
        if self.is_label:
            self.kind = 'label'
        elif op.startswith('v_mfma'):
            self.kind = 'mfma'
            self.passes = 8 if '32x32x16' in op or '32x32x8' in op else 4
            self.vw = set(V(ops[0])); self.srcAB = set(V(ops[1]) + V(ops[2])); self.srcC = set(V(ops[3]))
            self.vr = self.srcAB | self.srcC
            self.dlist = V(ops[0]); self.clist = V(ops[3])
        elif op.startswith('v_cmp'):
            self.kind = 'valu'
            self.sw = set(S(ops[0]))
            for o in ops[1:]: self.vr |= set(V(o)); self.sr |= set(S(o))
        elif op.startswith('v_readfirstlane') or op.startswith('v_readlane'):
            self.kind = 'valu'; self.readlane = True
            self.sw = set(S(ops[0])); self.vr = set(V(ops[1]))
        elif op.startswith('v_permlane'):
            self.kind = 'valu'; self.permlane = True
            self.vw = set(V(ops[0]) + V(ops[1])); self.vr = set(self.vw)
        elif op.startswith('v_'):
            self.kind = 'trans' if op.replace('_e32','').replace('_e64','') in TRANS else 'valu'
            self.vw = set(V(ops[0]))
            for o in ops[1:]: self.vr |= set(V(o)); self.sr |= set(S(o))
            if op.startswith('v_fmac') or op.startswith('v_pk_fmac') or 'dst_unused:UNUSED_PRESERVE' in self.mods: self.vr |= self.vw
            if op.startswith('v_cndmask') and len(ops) == 3: self.sr |= {106,107}
            if '_dpp' in op or 'row_' in self.mods or 'quad_perm' in self.mods:
                self.dpp = True; self.vr |= self.vw
        elif op.startswith('buffer_load') or op.startswith('global_load'):
            self.kind = 'vmload'
            if 'lds' in self.mods.split() or op.startswith('global_load_lds'):
                for o in ops: self.vr |= set(V(o)); self.sr |= set(S(o))
                self.sr |= {124}; self.ldsdma = True
            else:
                self.vw = set(V(ops[0]))
                if 'd16' in op: self.vr |= self.vw
                for o in ops[1:]: self.vr |= set(V(o)); self.sr |= set(S(o))
        elif op.startswith('buffer_store') or op.startswith('global_store') or op.startswith('buffer_atomic'):
            self.kind = 'vmstore'
            for o in ops: self.vr |= set(V(o)); self.sr |= set(S(o))
            self.wide = ('x4' in op or 'x3' in op)
            self.data = set(V(ops[0])) if op.startswith('buffer') else set(V(ops[1]))
        elif op.startswith('ds_read') or op.startswith('ds_bpermute') or op.startswith('ds_swizzle') or op.startswith('ds_permute'):
            self.kind = 'dsread'
            self.vw = set(V(ops[0]))
            for o in ops[1:]: self.vr |= set(V(o))
        elif op.startswith('ds_write'):
            self.kind = 'dswrite'
            for o in ops: self.vr |= set(V(o))
        elif op.startswith('s_load') or op.startswith('s_memtime') or op.startswith('s_memrealtime'):
            self.kind = 'smem'
            self.sw = set(S(ops[0]))
            for o in ops[1:]: self.sr |= set(S(o))
        elif op.startswith('s_nop'):
            self.kind = 'nop'; self.n = int(ops[0], 0) + 1
        elif op.startswith('s_waitcnt') or op in ('s_barrier', 's_endpgm', 's_setprio', 's_sleep'):
            self.kind = 'sync'
            m = re.search(r';;after (.*)$', self.text)
            self.after = set()
            if m:
                for o in m.group(1).split(): self.after |= set(V(o))
        elif op.startswith('s_cbranch') or op.startswith('s_branch') or op.startswith('s_setpc') or op.startswith('s_swappc'):
            self.kind = 'branch'
        elif op.startswith('s_'):
            self.kind = 'salu'
            if op.startswith('s_cmp') or op.startswith('s_bitcmp'):
                for o in ops: self.sr |= set(S(o))
            else:
                self.sw = set(S(ops[0]))
                for o in ops[1:]: self.sr |= set(S(o))
                if 'saveexec' in op: self.sw |= {126,127}
    def isvalu(self): return self.kind in ('valu', 'trans')
    def states(self):
        if self.kind == 'nop': return self.n
        if self.kind == 'label' or not self.op or self.op.startswith('.') or self.op.startswith(';'): return 0
        return 1

def required_gap(p, c):
    g = 0
    if p.isvalu():
        if c.kind == 'mfma' and (p.vw & c.vr): g = max(g, 2)
        if p.kind == 'trans' and c.kind == 'valu' and (p.vw & (c.vr | c.vw)): g = max(g, 1)
        if p.kind == 'trans' and c.kind in ('vmstore', 'dswrite', 'vmload', 'dsread') and (p.vw & c.vr): g = max(g, 1)
        if getattr(c, 'permlane', False) and (p.vw & c.vr): g = max(g, 2)
        if getattr(c, 'dpp', False) and (p.vw & c.vr): g = max(g, 2)
        if getattr(c, 'readlane', False) and (p.vw & c.vr): g = max(g, 1)
        if p.sw:
            if c.isvalu() and (p.sw & c.sr): g = max(g, 4 if getattr(c,'readlane',False) else 2)
            if c.kind in ('vmload', 'vmstore') and (p.sw & c.sr): g = max(g, 5)
            if c.kind in ('salu','branch','smem') and (p.sw & c.sr or c.kind=='branch'): g = max(g, 1)
            if ({126,127} & p.sw):
                if c.kind == 'mfma': g = max(g, 4)
                if getattr(c, 'dpp', False): g = max(g, 5)
                if getattr(c, 'permlane', False) or getattr(c, 'readlane', False): g = max(g, 4)
        if 'op_sel' in p.mods or 'sel:' in p.mods:
            if c.isvalu() and (p.vw & (c.vr | c.vw)): g = max(g, 1)
    if p.kind == 'mfma':
        P = p.passes
        full = {2: 5, 4: 8, 8: 12, 16: 20}[P]
        if c.kind == 'mfma':
            if p.vw & c.srcAB: g = max(g, full)
            if p.vw & c.srcC:
                if c.clist == p.dlist and c.op == p.op: g = max(g, 2 if P == 2 else 0)
                else: g = max(g, {2: 4, 4: 6, 8: 10, 16: 18}[P])
            elif p.vw & c.vw:
                if not (c.passes >= P): g = max(g, full)
        elif c.isvalu() or c.kind in ('vmload', 'vmstore', 'dsread', 'dswrite'):
            if p.vw & (c.vr | c.vw): g = max(g, full)
            if c.isvalu() and (p.srcC & c.vw): g = max(g, {2: 1, 4: 3, 8: 7, 16: 15}[P])
            if c.kind in ('vmload','dsread') and (p.srcC & c.vw): g = max(g, {2: 1, 4: 3, 8: 7, 16: 15}[P])
    if p.kind == 'vmstore' and p.wide:
        if (p.data & c.vw): g = max(g, 2 if c.isvalu() or c.kind=='mfma' else 1)
    if p.kind == 'salu' and 124 in p.sw and getattr(c, 'ldsdma', False): g = max(g, 1)
    if p.kind == 'salu' and ({126,127} & p.sw):
        pass
    return g

class Asm:
    def __init__(self):
        self.items = []
    def __call__(self, text):
        for line in text.split('\n'):
            if line.strip(): self.items.append(Ins(line))
    def extend(self, lst):
        for t in lst: self(t)
    def finalize(self, auto_wait=True):
        out = []
        vm = []
        lg = []
        nops = 0
        for ins in self.items:
            if auto_wait:
                touch = ins.vr | ins.vw
                need_vm = None; need_lg = None
                for k, regs in enumerate(vm):
                    if regs & touch: need_vm = len(vm) - 1 - k
                for k, (regs, sregs) in enumerate(lg):
                    if (regs & touch): need_lg = len(lg) - 1 - k
                    if sregs and (sregs & (ins.sr | ins.sw)): need_lg = 0
                if need_lg is not None and any(s for _, s in lg): need_lg = 0
                if need_vm is not None or need_lg is not None:
                    w = 's_waitcnt'
                    if need_vm is not None:
                        w += f' vmcnt({min(need_vm,63)})'; vm = vm[len(vm) - need_vm:] if need_vm else []
                    if need_lg is not None:
                        w += f' lgkmcnt({min(need_lg,15)})'; lg = lg[len(lg) - need_lg:] if need_lg else []
                    out.append(Ins(w))
                if ins.op == 's_waitcnt':
                    m = re.search(r'vmcnt\((\d+)\)', ins.text)
                    if m:
                        n = int(m.group(1)); vm = vm[len(vm) - n:] if n and n < len(vm) else ([] if n == 0 else vm)
                    m = re.search(r'lgkmcnt\((\d+)\)', ins.text)
                    if m:
                        n = int(m.group(1)); lg = lg[len(lg) - n:] if n and n < len(lg) else ([] if n == 0 else lg)
            need = 0; dist = 0
            for p in reversed(out[-40:]):
                g = required_gap(p, ins)
                if g > dist: need = max(need, g - dist)
                dist += p.states()
                if dist >= 24: break
            while need > 0:
                k = min(need, 16); out.append(Ins(f's_nop {k-1}')); need -= k; nops += k
            out.append(ins)
            if ins.kind in ('vmload', 'vmstore'): vm.append(set(ins.vw))
            if ins.kind in ('dsread', 'dswrite'): lg.append((set(ins.vw), set()))
            if ins.kind == 'smem': lg.append((set(), set(ins.sw) or {999}))
            if lg and len(lg) > 15: pass
        self.nops = nops
        return out
    def text(self, **kw):
        o = self.finalize(**kw)
        return '\n'.join(('' if i.is_label else '    ') + i.text for i in o) + '\n'

def interleave(main, fill, ratio=None):
    out = []
    n, m = len(main), len(fill)
    if m == 0: return list(main)
    if n == 0: return list(fill)
    j = 0
    for i, x in enumerate(main):
        while j < m and j * n <= i * m:
            out.append(fill[j]); j += 1
        out.append(x)
    out += fill[j:]
    return out


def issue_cost(ins):
    if ins.kind == 'mfma': return 8
    if ins.kind == 'trans' or getattr(ins, 'permlane', False): return 8
    if ins.kind == 'valu': return 4
    if ins.kind in ('vmload', 'vmstore'): return 8
    if ins.kind in ('dsread', 'dswrite'): return 4
    if ins.kind == 'nop': return 4 * ins.n
    return 4

def latency(p, c):
    if c.kind == 'sync': return issue_cost(p)
    if p.kind == 'mfma':
        if c.kind == 'mfma' and (p.vw & c.srcC) and c.clist == p.dlist and c.op == p.op and not (p.vw & c.srcAB):
            return p.passes * 4
        if p.vw & (c.vr | c.vw): return p.passes * 4 + 20
        return 8
    if p.kind == 'dsread' and (p.vw & (c.vr | c.vw)): return 128
    if p.kind == 'vmload' and (p.vw & (c.vr | c.vw)): return 600
    if p.kind == 'trans' and (p.vw & c.vr): return 12
    return issue_cost(p)

def schedule(texts, prio=None, window=400, verbose=False, mfma_first=True, tail_ctx=None):
    ops = [Ins(t) if isinstance(t, str) else t for t in texts]
    n = len(ops)
    preds = [[] for _ in range(n)]
    lastw = {}; readers = {}
    last_ds = None; last_vm = None
    def regs(i, w):
        o = ops[i]
        if w: return [('v', r) for r in o.vw] + [('s', r) for r in o.sw]
        return [('v', r) for r in o.vr] + [('s', r) for r in o.sr]
    for i, o in enumerate(ops):
        ps = set()
        for r in regs(i, False):
            if r in lastw: ps.add(lastw[r])
        for r in regs(i, True):
            if r in lastw: ps.add(lastw[r])
            for j in readers.get(r, []): ps.add(j)
        if o.kind in ('dsread', 'dswrite', 'sync'):
            if last_ds is not None: ps.add(last_ds)
            last_ds = i
        if o.kind in ('vmload', 'vmstore', 'sync'):
            if last_vm is not None: ps.add(last_vm)
            last_vm = i
        if o.kind == 'sync':
            for r in o.after:
                if ('v', r) in lastw: ps.add(lastw[('v', r)])
        assert o.kind not in ('branch', 'label'), o.text
        ps.discard(i)
        preds[i] = sorted(ps)
        for r in regs(i, True):
            lastw[r] = i; readers[r] = []
        for r in regs(i, False):
            readers.setdefault(r, []).append(i)
    succs = [[] for _ in range(n)]
    for i in range(n):
        for p in preds[i]: succs[p].append(i)
    npred = [len(p) for p in preds]
    done_t = [None] * n; done_idx = [None] * n
    ready = [i for i in range(n) if npred[i] == 0]
    t = 0; pipe_free = 0; idx = 0
    order = []; stall = 0
    if prio is None: prio = list(range(n))
    while len(order) < n:
        lo = min(ready, key=lambda i: prio[i])
        cands = []
        for i in ready:
            if prio[i] > prio[lo] + window: continue
            rt = 0; ok_idx = True; short = 0
            for p in preds[i]:
                rt = max(rt, done_t[p] + latency(ops[p], ops[i]))
                g = required_gap(ops[p], ops[i])
                short = max(short, g - (idx - done_idx[p] - 1))
            if ops[i].kind == 'mfma': rt = max(rt, pipe_free)
            rt = max(rt, t + 4 * max(short, 0))
            cands.append((rt, i))
        now = [(i) for rt, i in cands if rt <= t]
        if now:
            mf = [i for i in now if ops[i].kind == 'mfma']
            if mf and mfma_first: pick = min(mf, key=lambda i: prio[i])
            else: pick = min(now, key=lambda i: prio[i])
        else:
            rt, pick = min(cands, key=lambda x: (x[0], prio[x[1]]))
            stall += rt - t
            idx += (rt - t + 3) // 4 if False else 0
            t = rt
        o = ops[pick]
        done_t[pick] = t; done_idx[pick] = idx
        if o.kind == 'mfma': pipe_free = t + o.passes * 4
        t += issue_cost(o); idx += 1
        order.append(pick); ready.remove(pick)
        for s in succs[pick]:
            npred[s] -= 1
            if npred[s] == 0: ready.append(s)
    if verbose: print(f'schedule: {n} ops, est {t} cycles, stall {stall}')
    return [ops[i].text for i in order]
```

```python
import sys, math, struct
from asmlib import *

HEADER = """; Kernarg layout for this problem (64 bytes, ptrs only, base s[0:1]):
"""
KNAME = 'standalone__attention_interact_autoint__recsys_kernel'

def f32bits(x): return struct.unpack('<I', struct.pack('<f', x))[0]
def vr(b, n): return f'v[{b}:{b+n-1}]' if n > 1 else f'v{b}'

def gen(opts):
    A = Asm()
    vLane, vI, vHf, vT0, vT1 = 1, 2, 3, 4, 5
    vOffE, vOffT, vWa, vWb = 6, 7, 8, 9
    vOffO, vOffOT, vPW, vPWT, vPR, vChk = 10, 11, 12, 13, 14, 15
    E = [16, 32, 48]; ET = 64
    WK, WV, WQ, WR = 80, 96, 112, 128
    K = [144, 160, 176]; Q = [152, 168, 184]
    KT, QT = 192, 200
    V = [208, 216, 224]
    VT = 232
    PT = 234
    RT = 236
    TA = 240
    RES = [ET, E[0], E[1]]
    S = [WK, WV, WQ]
    CTX = [WR, E[2]]
    ONES = 240
    SGT = 244
    L = [248, 252]
    sW, sB, sH = 16, 17, 18
    SRD_E, SRD_O, SRD_W = 20, 24, 28
    s4096, s8192, sC, sSafe, sLO, sStep, sStep2, sStep3 = 32, 33, 34, 35, 36, 37, 38, 39
    LDS_W = 0
    LDS_Z = 32768
    LDS_P = 32768 + 256
    lds_total = LDS_P + 8 * 1024

    c_scale = math.log2(math.e) / math.sqrt(32.0)

    nst = [0]
    def stamp():
        if not opts.get('stamps'): return
        k = nst[0]; nst[0] += 1
        A(f's_memtime s[{64+4*k}:{65+4*k}]')
        A(f's_memrealtime s[{66+4*k}:{67+4*k}]')
    A(f'{KNAME}:')
    stamp()
    A('s_cmp_ge_u32 s2, 256')
    A('s_cbranch_scc1 L_end')
    A('s_load_dwordx8 s[4:11], s[0:1], 0')
    A('s_load_dwordx4 s[12:15], s[0:1], 32')
    A(f'v_lshrrev_b32 v{vT0}, 6, v0')
    A(f'v_and_b32 v{vLane}, 63, v0')
    A(f'v_readfirstlane_b32 s{sW}, v{vT0}')
    A(f'v_and_b32 v{vI}, 31, v0')
    A(f'v_bfe_u32 v{vHf}, v0, 5, 1')
    A(f's_mov_b32 s{s4096}, 4096')
    A(f's_mov_b32 s{s8192}, 8192')
    A(f's_mov_b32 s{sC}, 0x{f32bits(c_scale):08x}')
    A(f's_mov_b32 s{sSafe}, 0')
    A(f's_mov_b32 s{sLO}, 0x{(127-40)<<23:08x}')
    A(f's_lshr_b32 s{sB}, s{sW}, 1')
    A(f's_and_b32 s{sH}, s{sW}, 1')
    A(f'v_lshlrev_b32 v{vOffE}, 7, v{vI}')
    A(f'v_lshl_add_u32 v{vOffE}, v{vHf}, 4, v{vOffE}')
    A(f's_cmp_eq_u32 s{sB}, 3')
    A(f's_cselect_b32 s{sStep}, 1024, 0')
    A(f's_cselect_b32 s{sStep2}, 2048, 0')
    A(f's_cselect_b32 s{sStep3}, 3072, 0')
    A(f's_cselect_b32 s40, 64, 4096')
    A(f's_cselect_b32 s41, 7, 6')
    A(f's_mul_i32 s40, s40, s{sH}')
    A(f'v_lshrrev_b32 v{vT0}, 2, v{vLane}')
    A(f'v_lshlrev_b32 v{vT0}, s41, v{vT0}')
    A(f'v_and_b32 v{vT1}, 3, v{vLane}')
    A(f'v_lshl_add_u32 v{vT0}, v{vT1}, 4, v{vT0}')
    A(f'v_add_u32 v{vT0}, s40, v{vT0}')
    A(f's_lshl_b32 m0, s{sW}, 12')
    A('s_waitcnt lgkmcnt(0)')
    stamp()
    A(f's_cmp_eq_u32 s{sB}, 1')
    A(f's_cselect_b64 s[{SRD_W}:{SRD_W+1}], s[8:9], s[6:7]')
    A(f's_cmp_eq_u32 s{sB}, 2')
    A(f's_cselect_b64 s[{SRD_W}:{SRD_W+1}], s[10:11], s[{SRD_W}:{SRD_W+1}]')
    A(f's_cmp_eq_u32 s{sB}, 3')
    A(f's_cselect_b64 s[{SRD_W}:{SRD_W+1}], s[12:13], s[{SRD_W}:{SRD_W+1}]')
    A(f's_mov_b32 s{SRD_W+2}, 8192')
    A(f's_mov_b32 s{SRD_W+3}, 0x20000')
    for k, so in enumerate(['0', f's{sStep}', f's{sStep2}', f's{sStep3}']):
        A(f'buffer_load_dwordx4 v{vT0}, s[{SRD_W}:{SRD_W+3}], {so} offen offset:{k*1024} lds')
    A(f's_lshl_b32 s3, s2, 2')
    A(f's_add_u32 s{sB}, s{sB}, s3')
    A(f's_mul_i32 s19, s{sB}, 12800')
    A(f's_add_u32 s{SRD_E}, s4, s19')
    A(f's_addc_u32 s{SRD_E+1}, s5, 0')
    A(f's_mov_b32 s{SRD_E+2}, 12800')
    A(f's_mov_b32 s{SRD_E+3}, 0x20000')
    A(f's_add_u32 s{SRD_O}, s14, s19')
    A(f's_addc_u32 s{SRD_O+1}, s15, 0')
    A(f's_mov_b32 s{SRD_O+2}, 12800')
    A(f's_mov_b32 s{SRD_O+3}, 0x20000')
    A(f'v_bfe_u32 v{vT0}, v{vI}, 3, 1')
    A(f'v_and_b32 v{vT1}, 1, v{vI}')
    A(f'v_lshl_add_u32 v{vT0}, v{vT0}, 1, v{vT1}')
    A(f'v_lshlrev_b32 v{vOffT}, 7, v{vT0}')
    A(f'v_lshl_add_u32 v{vOffT}, v{vHf}, 4, v{vOffT}')
    A(f'v_add_u32 v{vOffT}, {96*128}, v{vOffT}')
    A(f'v_lshrrev_b32 v{vT1}, 2, v{vI}')
    A(f'v_xor_b32 v{vT1}, v{vT1}, v{vI}')
    A(f'v_and_b32 v{vT1}, 4, v{vT1}')
    A(f'v_and_or_b32 v{vT1}, v{vI}, 2, v{vT1}')
    A(f'v_cmp_eq_u32 vcc, 0, v{vT1}')
    A(f'v_mov_b32 v{vT1}, 0x100000')
    A(f'v_cndmask_b32 v{vOffT}, v{vT1}, v{vOffT}, vcc')
    A(f's_lshl_b32 s42, s{sW}, 10')
    A(f's_add_u32 s42, s42, {LDS_P}')
    A(f'v_lshlrev_b32 v{vPR}, 8, v{vT0}')
    A(f'v_lshl_add_u32 v{vPR}, v{vHf}, 4, v{vPR}')
    A(f'v_add_u32 v{vPR}, s42, v{vPR}')
    A(f'v_mov_b32 v{vT1}, {LDS_Z}')
    A(f'v_cndmask_b32 v{vPR}, v{vT1}, v{vPR}, vcc')
    A('L_restart:')
    def eloads():
        for s in range(4):
            A(f'buffer_load_dwordx4 {vr(ET+4*s,4)}, v{vOffT}, s[{SRD_E}:{SRD_E+3}], 0 offen offset:{32*s}')
        for t, so in enumerate(['0', f's{s4096}', f's{s8192}']):
            for s in range(4):
                A(f'buffer_load_dwordx4 {vr(E[t]+4*s,4)}, v{vOffE}, s[{SRD_E}:{SRD_E+3}], {so} offen offset:{32*s}')
    eloads()
    A(f'v_mov_b32 v{VT+1}, 0')
    A(f'v_mov_b32 v{PT+1}, 0')
    A(f'v_lshlrev_b32 v{vT0}, 2, v{vLane}')
    A(f'ds_write_b32 v{vT0}, v{VT+1} offset:{LDS_Z}')
    A(f'v_bfe_u32 v{vT0}, v{vLane}, 2, 2')
    A(f'v_lshl_add_u32 v{vT0}, v{vHf}, 3, v{vT0}')
    A(f'v_lshlrev_b32 v{vT0}, 6, v{vT0}')
    A(f's_lshl_b32 s43, s{sH}, 12')
    A(f'v_add_u32 v{vT0}, s43, v{vT0}')
    A(f'v_bfe_u32 v{vT1}, v{vLane}, 4, 1')
    A(f'v_lshl_add_u32 v{vT0}, v{vT1}, 5, v{vT0}')
    A(f'v_and_b32 v{vT1}, 3, v{vLane}')
    A(f'v_lshl_add_u32 v{vWa}, v{vT1}, 3, v{vT0}')
    A(f'v_and_b32 v{vT1}, 1, v{vLane}')
    A(f'v_lshl_add_u32 v{vWb}, v{vT1}, 4, v{vT0}')
    A(f'v_bfe_u32 v{vT1}, v{vLane}, 1, 1')
    A(f'v_lshl_add_u32 v{vWb}, v{vT1}, 3, v{vWb}')
    A(f's_lshl_b32 s43, s{sH}, 6')
    A(f'v_add_u32 v{vOffO}, s43, v{vOffE}')
    A(f'v_and_b32 v{vT0}, 0x13, v{vI}')
    A(f'v_bfe_u32 v{vT1}, v{vI}, 2, 1')
    A(f'v_lshl_add_u32 v{vT0}, v{vT1}, 3, v{vT0}')
    A(f'v_bfe_u32 v{vT1}, v{vI}, 3, 1')
    A(f'v_lshl_add_u32 v{vT0}, v{vT1}, 2, v{vT0}')
    A(f'v_lshlrev_b32 v{vT0}, 1, v{vT0}')
    A(f'v_lshl_add_u32 v{vOffOT}, v{vHf}, 8, v{vT0}')
    A(f'v_add_u32 v{vOffOT}, s43, v{vOffOT}')
    A(f'v_add_u32 v{vOffOT}, {96*128}, v{vOffOT}')
    A(f'v_lshl_add_u32 v{vPW}, v{vHf}, 9, v{vT0}')
    A(f'v_add_u32 v{vPW}, s42, v{vPW}')
    A(f'v_bfe_u32 v{vT0}, v{vI}, 3, 1')
    A(f'v_and_b32 v{vT1}, 3, v{vI}')
    A(f'v_lshl_add_u32 v{vT0}, v{vT0}, 3, v{vT1}')
    A(f'v_lshlrev_b32 v{vT0}, 1, v{vT0}')
    A(f'v_add_u32 v{vT0}, 192, v{vT0}')
    A(f'v_and_b32 v{vT1}, 0x14, v{vI}')
    A(f'v_cmp_eq_u32 vcc, 0, v{vT1}')
    A(f'v_mov_b32 v{vT1}, 240')
    A(f'v_cndmask_b32 v{vT0}, v{vT1}, v{vT0}, vcc')
    A(f'v_lshl_add_u32 v{vPWT}, v{vHf}, 9, v{vT0}')
    A(f'v_add_u32 v{vPWT}, s42, v{vPWT}')
    A(f'v_mov_b32 v{vChk}, 0')
    A(f's_cmp_lg_u32 s{sSafe}, 0')
    A('s_cbranch_scc1 L_nobar')
    stamp()
    A('s_waitcnt vmcnt(16) lgkmcnt(0)')
    stamp()
    A('s_barrier')
    stamp()
    A('L_nobar:')
    pro = []
    for (Wb, mat, va) in ((WK, 1, vWa), (WV, 2, vWb), (WQ, 0, vWa), (WR, 3, vWb)):
        for s in range(4):
            for z in range(2):
                pro.append(f'ds_read_b64_tr_b16 {vr(Wb+4*s+2*z,2)}, v{va} offset:{LDS_W + mat*8192 + s*1024 + z*256}')
    A.extend(pro)

    M32 = 'v_mfma_f32_32x32x16_bf16'; M16 = 'v_mfma_f32_16x16x32_bf16'
    M32h = 'v_mfma_f32_32x32x8_bf16'; M16h = 'v_mfma_f32_16x16x16_bf16'
    def chain(op, D, nd, pairs, w=4):
        out = []
        for k, (a, b) in enumerate(pairs):
            cc = '0' if k == 0 else vr(D, nd)
            out.append(f'{op} {vr(D,nd)}, {vr(a,w)}, {vr(b,w)}, {cc}')
        return out
    def cvt(dst, src, n):
        return [f'v_cvt_pk_bf16_f32 v{dst+x}, v{src+2*x}, v{src+2*x+1}' for x in range(n)]
    def scale(src, n):
        return [f'v_mul_f32 v{src+x}, s{sC}, v{src+x}' for x in range(n)]

    P = []
    tb = K[1]
    P += chain(M32, TA, 16, [(WK+4*s, ET+4*s) for s in range(4)]) + cvt(KT, TA, 8)
    P += chain(M16, RT, 4, [(ET+4*s, WV+4*s) for s in range(4)]) + [f'v_cvt_pk_bf16_f32 v{VT}, v{RT}, v{RT+1}']
    P += chain(M32, tb, 16, [(WQ+4*s, ET+4*s) for s in range(4)]) + scale(tb, 16) + cvt(QT, tb, 8)
    P += chain(M16, RT, 4, [(ET+4*s, WR+4*s) for s in range(4)])
    temps = {0: (TA, K[1], K[2]), 1: (TA, K[2], TA), 2: (TA, WK, WV)}
    for t in range(3):
        ta, tb, tc = temps[t]
        P += chain(M32, ta, 16, [(WK+4*s, E[t]+4*s) for s in range(4)]) + cvt(K[t], ta, 8)
        P += chain(M32, tb, 16, [(E[t]+4*s, WV+4*s) for s in range(4)]) + cvt(V[t], tb, 8)
        P += chain(M32, tc, 16, [(WQ+4*s, E[t]+4*s) for s in range(4)]) + scale(tc, 16) + cvt(Q[t], tc, 8)
        P += chain(M32, RES[t], 16, [(WR+4*s, E[t]+4*s) for s in range(4)])
    P += [f'v_lshrrev_b32 v{vT0}, 2, v{vLane}', f'v_xor_b32 v{vT0}, v{vT0}, v{vLane}', f'v_and_b32 v{vT0}, 4, v{vT0}',
          f'v_cmp_eq_u32 vcc, 0, v{vT0}', f'v_mov_b32 v{vT1}, 0x3f803f80',
          f'v_cndmask_b32 v{ONES}, 0, v{vT1}, vcc'] + [f'v_mov_b32 v{ONES+k}, v{ONES}' for k in (1, 2, 3)]

    def body(safe):
        X = []
        def smm(t, g):
            if g < 3: return chain(M32, S[g], 16, [(K[g]+4*u, Q[t]+4*u) for u in range(2)])
            return chain(M16, SGT, 4, [(KT+4*u, Q[t]+4*u) for u in range(2)])
        for t in range(3):
            ctx = CTX[t & 1]; l = L[t & 1]
            for g in range(4): X += smm(t, g)
            if safe:
                m = vT0
                regs = [S[g]+r for g in range(3) for r in range(16)] + [SGT, SGT+1]
                X.append(f'v_max_f32 v{m}, v{regs[0]}, v{regs[1]}')
                for k in range(2, 50, 2): X.append(f'v_max3_f32 v{m}, v{regs[k]}, v{regs[k+1]}, v{m}')
                X.append(f'v_mov_b32 v{vT1}, v{m}')
                X.append(f'v_permlane32_swap_b32 v{m}, v{vT1}')
                X.append(f'v_max_f32 v{m}, v{m}, v{vT1}')
                for r in regs: X.append(f'v_sub_f32 v{r}, v{r}, v{m}')
            first = True
            for g in range(3):
                for u in range(2):
                    b = S[g] + 8*u
                    X += [f'v_exp_f32 v{b+r}, v{b+r}' for r in range(8)]
                    X += cvt(b, b, 4)
                    cc = '0' if first else vr(ctx, 16)
                    X.append(f'{M32} {vr(ctx,16)}, {vr(V[g]+4*u,4)}, {vr(b,4)}, {cc}')
                    cc = '0' if first else vr(l, 4)
                    X.append(f'{M16} {vr(l,4)}, {vr(ONES,4)}, {vr(b,4)}, {cc}')
                    first = False
            X += [f'v_exp_f32 v{SGT}, v{SGT}', f'v_exp_f32 v{SGT+1}, v{SGT+1}', f'v_cvt_pk_bf16_f32 v{PT}, v{SGT}, v{SGT+1}']
            X.append(f'{M32h} {vr(ctx,16)}, {vr(VT,2)}, {vr(PT,2)}, {vr(ctx,16)}')
            X.append(f'{M16h} {vr(l,4)}, {vr(ONES,2)}, {vr(PT,2)}, {vr(l,4)}')
            X.append(f'v_rcp_f32 v{l+1}, v{l}')
            if not safe:
                X.append(f'v_subrev_u32 v{l+2}, s{sLO}, v{l}')
                X.append(f'v_max_u32 v{vChk}, v{vChk}, v{l+2}')
            X += [f'v_fma_f32 v{ctx+r}, v{ctx+r}, v{l+1}, v{RES[t]+r}' for r in range(16)]
            X += cvt(ctx, ctx, 8)
            X += [f'v_pk_max_i16 v{ctx+r}, v{ctx+r}, 0' for r in range(8)]
            so = ['0', f's{s4096}', f's{s8192}'][t]
            for x in range(2):
                X.append(f'buffer_store_dwordx4 {vr(ctx+4*x,4)}, v{vOffO}, s[{SRD_O}:{SRD_O+3}], {so} offen offset:{32*x}')
        SF = RES[0]
        PS = RES[1]
        ONA = Q[0]
        CT = Q[1]
        LT = Q[1] + 4
        for g in range(4):
            kb = K[g] if g < 3 else KT
            X += chain(M16, SF+4*g, 4, [(QT+4*u, kb+4*u) for u in range(2)])
        if safe:
            X.append(f'v_and_b32 v{vT0}, 0x16, v{vI}')
            X.append(f'v_cmp_eq_u32 vcc, 0, v{vT0}')
            for r in range(2):
                m = vT0 if r == 0 else vT1
                X.append(f'v_cndmask_b32 v{m}, v{SF+r}, v{SF+12+r}, vcc')
                X.append(f'v_max3_f32 v{m}, v{m}, v{SF+r}, v{SF+4+r}')
                X.append(f'v_max_f32 v{m}, v{m}, v{SF+8+r}')
                for sh in (1, 2, 4, 8):
                    X.append(f'v_max_f32_dpp v{m}, v{m}, v{m} row_ror:{sh} row_mask:0xf bank_mask:0xf')
                X.append(f'v_mov_b32 v{SF+2}, v{m}')
                X.append(f'v_permlane16_swap_b32 v{m}, v{SF+2}')
                X.append(f'v_max_f32 v{m}, v{m}, v{SF+2}')
                for g in range(4):
                    X.append(f'v_sub_f32 v{SF+4*g+r}, v{SF+4*g+r}, v{m}')
                X.append(f'v_min_f32 v{SF+12+r}, 0, v{SF+12+r}')
        for g in range(4):
            b = SF + 4*g
            X += [f'v_exp_f32 v{b}, v{b}', f'v_exp_f32 v{b+1}, v{b+1}', f'v_cvt_pk_bf16_f32 v{b}, v{b}, v{b+1}']
            va, off = (vPW, 64*g) if g < 3 else (vPWT, 0)
            X.append(f'ds_write_b16 v{va}, v{b} offset:{off}')
            X.append(f'ds_write_b16_d16_hi v{va}, v{b} offset:{off+256}')
        for ks in range(6):
            X.append(f'ds_read_b128 {vr(PS+4*ks,4)}, v{vPR} offset:{32*ks}')
        X.append(f'ds_read_b64 {vr(PS+24,2)}, v{vPR} offset:192')
        X += [f'v_mov_b32 v{ONA+k}, 0x3f803f80' for k in range(5)] + [f'v_mov_b32 v{ONA+5}, 0']
        X += chain(M16, CT, 4, [(PS+4*ks, V[ks>>1]+4*(ks&1)) for ks in range(6)])
        X.append(f'{M16h} {vr(CT,4)}, {vr(PS+24,2)}, {vr(VT,2)}, {vr(CT,4)}')
        X += chain(M16, LT, 4, [(PS+4*ks, ONA) for ks in range(6)])
        X.append(f'{M16h} {vr(LT,4)}, {vr(PS+24,2)}, {vr(ONA+4,2)}, {vr(LT,4)}')
        for r in range(2):
            X.append(f'v_rcp_f32 v{LT+2+r}, v{LT+r}')
            if not safe:
                X.append(f'v_subrev_u32 v{LT+r}, s{sLO}, v{LT+r}')
                X.append(f'v_max_u32 v{vChk}, v{vChk}, v{LT+r}')
            X.append(f'v_fma_f32 v{CT+r}, v{CT+r}, v{LT+2+r}, v{RT+r}')
        X.append(f'v_cvt_pk_bf16_f32 v{CT}, v{CT}, v{CT+1}')
        X.append(f'v_pk_max_i16 v{CT}, v{CT}, 0')
        X.append(f'buffer_store_short v{CT}, v{vOffOT}, s[{SRD_O}:{SRD_O+3}], 0 offen')
        X.append(f'buffer_store_short_d16_hi v{CT}, v{vOffOT}, s[{SRD_O}:{SRD_O+3}], 0 offen offset:128')
        return X

    if opts.get('sched', True):
        A.extend(schedule(P, verbose=True, window=60))
    else:
        A.extend(P)
    A('s_nop 15')
    stamp()
    A(f's_cmp_lg_u32 s{sSafe}, 0')
    A('s_cbranch_scc1 L_safe')
    fast = body(False)
    if opts.get('sched', True): fast = schedule(fast, verbose=True, window=opts.get('window', 150))
    A.extend(fast)
    stamp()
    if opts.get('stamps'):
        A('s_waitcnt vmcnt(0)')
        stamp()
        A('s_load_dwordx2 s[48:49], s[0:1], 56')
        A('s_waitcnt lgkmcnt(0)')
        A('s_mov_b32 s50, 0x1000000')
        A('s_mov_b32 s51, 0x20000')
        A(f's_lshl_b32 s3, s2, 3')
        A(f's_add_u32 s3, s3, s{sW}')
        A(f's_lshl_b32 s3, s3, 7')
        A(f'v_mov_b32 v{vT0}, s3')
        for k in range(nst[0]):
            A(f'v_mov_b32 v{vT1}, s{64+4*k}')
            A(f'buffer_store_dword v{vT1}, v{vT0}, s[48:51], 0 offen offset:{4*k}')
            A(f'v_mov_b32 v{vT1}, s{66+4*k}')
            A(f'buffer_store_dword v{vT1}, v{vT0}, s[48:51], 0 offen offset:{64+4*k}')
    A(f's_mov_b32 s44, 0x{80<<23:08x}')
    A(f'v_cmp_le_u32 vcc, s44, v{vChk}')
    if opts.get('force_safe'): A('s_mov_b64 vcc, -1')
    A('s_nop 4')
    A('s_cbranch_vccz L_end')
    A(f's_mov_b32 s{sSafe}, 1')
    A('s_waitcnt vmcnt(0) lgkmcnt(0)')
    A('s_nop 15')
    A('s_branch L_restart')
    A('L_safe:')
    A('s_waitcnt vmcnt(0) lgkmcnt(0)')
    A('s_nop 15')
    A.extend(body(True))
    A('L_end:')
    A('s_endpgm')
    txt = A.text()
    print('nops inserted:', A.nops, file=sys.stderr)
    out = HEADER + f'; @launch grid=(256,1,1) block=(512,1,1) lds={lds_total}\n'
    out += '.amdgcn_target "amdgcn-amd-amdhsa--gfx950"\n.text\n'
    out += f'.globl {KNAME}\n.p2align 8\n.type {KNAME},@function\n'
    out += txt
    out += f""".section .rodata,"a"
.p2align 6
.amdhsa_kernel {KNAME}
  .amdhsa_next_free_vgpr 256
  .amdhsa_next_free_sgpr 100
  .amdhsa_accum_offset 256
  .amdhsa_group_segment_fixed_size 0
  .amdhsa_kernarg_size 64
  .amdhsa_user_sgpr_count 2
  .amdhsa_user_sgpr_kernarg_segment_ptr 1
  .amdhsa_system_sgpr_workgroup_id_x 1
.end_amdhsa_kernel
"""
    return out

if __name__ == '__main__':
    opts = {}
    outp = sys.argv[1]
    for a in sys.argv[2:]:
        k, v = a.split('=')
        opts[k] = int(v)
    open(outp, 'w').write(gen(opts))
```

```python
import sys, math, struct
from asmlib import *
from gen1 import HEADER, KNAME, f32bits, vr

def gen(opts):
    A = Asm()
    vLane, vI, vHf, vT0, vT1 = 1, 2, 3, 4, 5
    vWa, vWb = 8, 9
    vOW, vOR, vOffO, vOffOT, vPW, vPWT, vPR, vChk = 6, 7, 10, 11, 12, 13, 14, 15
    E = [16, 32, 48]; ET = 64
    WK, WV, WQ, WR = 80, 96, 112, 128
    K = [144, 160, 176]; Q = [152, 168, 184]
    KT, QT = 192, 200
    V = [208, 216, 224]
    VT = 232; PT = 234; RT = 236
    TA = 240
    RES = [ET, E[0], E[1]]
    S = [WK, WV, WQ]
    CTX = [WR, E[2]]
    ONES = 240; SGT = 244; L = [248, 252]
    vEA = [224, 225, 226, 227]; vETA = [228, 229, 230, 231]
    vD0, vD1 = 216, 217
    sW, sB, sH = 16, 17, 18
    SRD_E, SRD_O, SRD_W, SRD_C = 20, 24, 28, 52
    s4096, s8192, sC, sSafe, sLO, sStep, sStep2, sStep3, s12288, sEB = 32, 33, 34, 35, 36, 37, 38, 39, 45, 42
    LDS_W = 0
    LDS_E = 32768
    EBYTES = 13312
    lds_total = LDS_E + 8 * EBYTES
    ZOFF = 12800
    POFF = 8192
    OOFF = 0
    stpol = {0: '', 1: ' nt', 2: ' sc1', 3: ' sc0 sc1', 4: ' sc0 sc1 nt'}[opts.get('stpol', 0)]
    ldpol = {0: '', 1: ' nt'}[opts.get('ldpol', 0)]

    c_scale = math.log2(math.e) / math.sqrt(32.0)
    nst = [0]
    def stamp():
        if not opts.get('stamps'): return
        k = nst[0]; nst[0] += 1
        A(f's_memtime s[{64+4*k}:{65+4*k}]')
        A(f's_memrealtime s[{66+4*k}:{67+4*k}]')

    A(f'{KNAME}:')
    stamp()
    A('s_cmp_ge_u32 s2, 256')
    A('s_cbranch_scc1 L_end')
    A('s_load_dwordx8 s[4:11], s[0:1], 0')
    A('s_load_dwordx4 s[12:15], s[0:1], 32')
    npre = 0
    if opts.get('prefetch', 1):
        A(f's_getpc_b64 s[{SRD_C}:{SRD_C+1}]')
        A('L_pc:')
        A(f's_mov_b32 s{SRD_C+2}, L_safe-L_pc')
        A(f's_mov_b32 s{SRD_C+3}, 0x20000')
        A(f'v_lshlrev_b32 v{vT0}, 6, v0')
        A(f'buffer_load_dword v{RT}, v{vT0}, s[{SRD_C}:{SRD_C+3}], 0 offen')
        npre = 1
    A(f'v_lshrrev_b32 v{vT0}, 6, v0')
    A(f'v_and_b32 v{vLane}, 63, v0')
    A(f'v_readfirstlane_b32 s{sW}, v{vT0}')
    A(f'v_and_b32 v{vI}, 31, v0')
    A(f'v_bfe_u32 v{vHf}, v0, 5, 1')
    A(f's_mov_b32 s{s4096}, 4096')
    A(f's_mov_b32 s{s8192}, 8192')
    A(f's_mov_b32 s{s12288}, 12288')
    A(f's_mov_b32 s{sC}, 0x{f32bits(c_scale):08x}')
    A(f's_mov_b32 s{sSafe}, 0')
    A(f's_mov_b32 s{sLO}, 0x{(127-40)<<23:08x}')
    A(f's_lshr_b32 s{sB}, s{sW}, 1')
    A(f's_and_b32 s{sH}, s{sW}, 1')
    A(f's_cmp_eq_u32 s{sB}, 3')
    A(f's_cselect_b32 s{sStep}, 1024, 0')
    A(f's_cselect_b32 s{sStep2}, 2048, 0')
    A(f's_cselect_b32 s{sStep3}, 3072, 0')
    A(f's_cselect_b32 s40, 64, 4096')
    A(f's_cselect_b32 s41, 7, 6')
    A(f's_mul_i32 s40, s40, s{sH}')
    A(f'v_lshrrev_b32 v{vT0}, 2, v{vLane}')
    A(f'v_lshlrev_b32 v{vT0}, s41, v{vT0}')
    A(f'v_and_b32 v{vT1}, 3, v{vLane}')
    A(f'v_lshl_add_u32 v{vT0}, v{vT1}, 4, v{vT0}')
    A(f'v_add_u32 v{vT0}, s40, v{vT0}')
    A(f's_lshl_b32 m0, s{sW}, 12')
    A(f'v_lshrrev_b32 v{vT1}, 4, v{vLane}')
    A(f'v_xor_b32 v{vT1}, v{vT1}, v{vLane}')
    A(f'v_and_b32 v{vT1}, 7, v{vT1}')
    A(f'v_lshlrev_b32 v{vT1}, 4, v{vT1}')
    A(f'v_lshrrev_b32 v{vD0}, 3, v{vLane}')
    A(f'v_lshl_add_u32 v{vD0}, v{vD0}, 7, v{vT1}')
    A(f'v_xor_b32 v{vD1}, 64, v{vD0}')
    A(f's_mul_i32 s{sEB}, s{sW}, {EBYTES}')
    A(f's_add_u32 s{sEB}, s{sEB}, {LDS_E}')
    A(f's_lshl_b32 s3, s2, 2')
    A(f's_add_u32 s19, s{sB}, s3')
    A(f's_mul_i32 s19, s19, 12800')
    A('s_waitcnt lgkmcnt(0)')
    stamp()
    A(f's_cmp_eq_u32 s{sB}, 1')
    A(f's_cselect_b64 s[{SRD_W}:{SRD_W+1}], s[8:9], s[6:7]')
    A(f's_cmp_eq_u32 s{sB}, 2')
    A(f's_cselect_b64 s[{SRD_W}:{SRD_W+1}], s[10:11], s[{SRD_W}:{SRD_W+1}]')
    A(f's_cmp_eq_u32 s{sB}, 3')
    A(f's_cselect_b64 s[{SRD_W}:{SRD_W+1}], s[12:13], s[{SRD_W}:{SRD_W+1}]')
    A(f's_mov_b32 s{SRD_W+2}, 8192')
    A(f's_mov_b32 s{SRD_W+3}, 0x20000')
    for k, so in enumerate(['0', f's{sStep}', f's{sStep2}', f's{sStep3}']):
        A(f'buffer_load_dwordx4 v{vT0}, s[{SRD_W}:{SRD_W+3}], {so} offen offset:{k*1024} lds')
    A(f's_add_u32 s{SRD_E}, s4, s19')
    A(f's_addc_u32 s{SRD_E+1}, s5, 0')
    A(f's_mov_b32 s{SRD_E+2}, 12800')
    A(f's_mov_b32 s{SRD_E+3}, 0x20000')
    A(f's_add_u32 s{SRD_O}, s14, s19')
    A(f's_addc_u32 s{SRD_O+1}, s15, 0')
    A(f's_mov_b32 s{SRD_O+2}, 12800')
    A(f's_mov_b32 s{SRD_O+3}, 0x20000')
    def edma():
        A(f's_add_u32 m0, s{sEB}, 12288')
        A(f'buffer_load_dwordx4 v{vD0}, s[{SRD_E}:{SRD_E+3}], s{s12288} offen{ldpol} lds')
        for t, so in enumerate(['0', f's{s4096}', f's{s8192}']):
            A(f's_add_u32 m0, s{sEB}, {4096*t}')
            for k in range(4):
                A(f'buffer_load_dwordx4 v{vD1 if k & 1 else vD0}, s[{SRD_E}:{SRD_E+3}], {so} offen offset:{1024*k}{ldpol} lds')
    delay = opts.get('delay', 1)
    if delay:
        A(f's_cmp_ge_u32 s{sW}, 4')
        A('s_cbranch_scc1 L_skip1')
    edma()
    if delay:
        A('L_skip1:')
    A(f'v_bfe_u32 v{vT0}, v{vI}, 1, 3')
    A(f'v_xor_b32 v{vT0}, v{vT0}, v{vHf}')
    A(f'v_lshlrev_b32 v{vT0}, 4, v{vT0}')
    A(f'v_lshl_add_u32 v{vT0}, v{vI}, 7, v{vT0}')
    A(f'v_add_u32 v{vEA[0]}, s{sEB}, v{vT0}')
    for s in range(1, 4): A(f'v_xor_b32 v{vEA[s]}, {32*s}, v{vEA[0]}')
    A(f'v_bfe_u32 v{vT0}, v{vI}, 3, 1')
    A(f'v_and_b32 v{vT1}, 1, v{vI}')
    A(f'v_lshl_add_u32 v{vT1}, v{vT0}, 1, v{vT1}')
    A(f'v_xor_b32 v{vT0}, v{vT0}, v{vHf}')
    A(f'v_lshlrev_b32 v{vT0}, 4, v{vT0}')
    A(f'v_lshl_add_u32 v{vETA[0]}, v{vT1}, 7, v{vT0}')
    A(f'v_add_u32 v{vETA[0]}, {96*128}, v{vETA[0]}')
    A(f'v_lshlrev_b32 v{vPR}, 8, v{vT1}')
    A(f'v_lshl_add_u32 v{vPR}, v{vHf}, 4, v{vPR}')
    A(f'v_add_u32 v{vPR}, {POFF}, v{vPR}')
    A(f'v_lshrrev_b32 v{vT1}, 2, v{vI}')
    A(f'v_xor_b32 v{vT1}, v{vT1}, v{vI}')
    A(f'v_and_b32 v{vT1}, 4, v{vT1}')
    A(f'v_and_or_b32 v{vT1}, v{vI}, 2, v{vT1}')
    A(f'v_cmp_eq_u32 vcc, 0, v{vT1}')
    A(f'v_mov_b32 v{vT1}, {ZOFF}')
    A(f'v_cndmask_b32 v{vETA[0]}, v{vT1}, v{vETA[0]}, vcc')
    A(f'v_cndmask_b32 v{vPR}, v{vT1}, v{vPR}, vcc')
    A(f'v_add_u32 v{vETA[0]}, s{sEB}, v{vETA[0]}')
    A(f'v_add_u32 v{vPR}, s{sEB}, v{vPR}')
    for s in range(1, 4): A(f'v_xor_b32 v{vETA[s]}, {32*s}, v{vETA[0]}')
    A(f'v_mov_b32 v{VT+1}, 0')
    A(f'v_mov_b32 v{PT+1}, 0')
    A(f'v_bfe_u32 v{vT0}, v{vLane}, 2, 2')
    A(f'v_lshl_add_u32 v{vT0}, v{vHf}, 3, v{vT0}')
    A(f'v_lshlrev_b32 v{vT0}, 6, v{vT0}')
    A(f's_lshl_b32 s43, s{sH}, 12')
    A(f'v_add_u32 v{vT0}, s43, v{vT0}')
    A(f'v_bfe_u32 v{vT1}, v{vLane}, 4, 1')
    A(f'v_lshl_add_u32 v{vT0}, v{vT1}, 5, v{vT0}')
    A(f'v_and_b32 v{vT1}, 3, v{vLane}')
    A(f'v_lshl_add_u32 v{vWa}, v{vT1}, 3, v{vT0}')
    A(f'v_and_b32 v{vT1}, 1, v{vLane}')
    A(f'v_lshl_add_u32 v{vWb}, v{vT1}, 4, v{vT0}')
    A(f'v_bfe_u32 v{vT1}, v{vLane}, 1, 1')
    A(f'v_lshl_add_u32 v{vWb}, v{vT1}, 3, v{vWb}')
    A(f'v_bfe_u32 v{vT0}, v{vI}, 1, 2')
    A(f'v_xor_b32 v{vT0}, v{vT0}, v{vHf}')
    A(f'v_lshlrev_b32 v{vT0}, 4, v{vT0}')
    A(f'v_lshl_add_u32 v{vOW}, v{vI}, 6, v{vT0}')
    A(f'v_add_u32 v{vOW}, s{sEB}, v{vOW}')
    A(f'v_lshrrev_b32 v{vT0}, 3, v{vLane}')
    A(f'v_xor_b32 v{vT0}, v{vT0}, v{vLane}')
    A(f'v_and_b32 v{vT0}, 3, v{vT0}')
    A(f'v_lshlrev_b32 v{vT0}, 4, v{vT0}')
    A(f'v_lshrrev_b32 v{vT1}, 2, v{vLane}')
    A(f'v_lshl_add_u32 v{vOR}, v{vT1}, 6, v{vT0}')
    A(f'v_add_u32 v{vOR}, s{sEB}, v{vOR}')
    A(f's_lshl_b32 s43, s{sH}, 6')
    A(f'v_and_b32 v{vT0}, 3, v{vLane}')
    A(f'v_lshlrev_b32 v{vT0}, 4, v{vT0}')
    A(f'v_lshl_add_u32 v{vOffO}, v{vT1}, 7, v{vT0}')
    A(f'v_add_u32 v{vOffO}, s43, v{vOffO}')
    A(f'v_and_b32 v{vT0}, 0x13, v{vI}')
    A(f'v_bfe_u32 v{vT1}, v{vI}, 2, 1')
    A(f'v_lshl_add_u32 v{vT0}, v{vT1}, 3, v{vT0}')
    A(f'v_bfe_u32 v{vT1}, v{vI}, 3, 1')
    A(f'v_lshl_add_u32 v{vT0}, v{vT1}, 2, v{vT0}')
    A(f'v_lshlrev_b32 v{vT0}, 1, v{vT0}')
    A(f'v_lshl_add_u32 v{vOffOT}, v{vHf}, 8, v{vT0}')
    A(f'v_add_u32 v{vOffOT}, s43, v{vOffOT}')
    A(f'v_add_u32 v{vOffOT}, {96*128}, v{vOffOT}')
    A(f's_add_u32 s43, s{sEB}, {POFF}')
    A(f'v_lshl_add_u32 v{vPW}, v{vHf}, 9, v{vT0}')
    A(f'v_add_u32 v{vPW}, s43, v{vPW}')
    A(f'v_bfe_u32 v{vT0}, v{vI}, 3, 1')
    A(f'v_and_b32 v{vT1}, 3, v{vI}')
    A(f'v_lshl_add_u32 v{vT0}, v{vT0}, 3, v{vT1}')
    A(f'v_lshlrev_b32 v{vT0}, 1, v{vT0}')
    A(f'v_add_u32 v{vT0}, 192, v{vT0}')
    A(f'v_and_b32 v{vT1}, 0x14, v{vI}')
    A(f'v_cmp_eq_u32 vcc, 0, v{vT1}')
    A(f'v_mov_b32 v{vT1}, 240')
    A(f'v_cndmask_b32 v{vT0}, v{vT1}, v{vT0}, vcc')
    A(f'v_lshl_add_u32 v{vPWT}, v{vHf}, 9, v{vT0}')
    A(f'v_add_u32 v{vPWT}, s43, v{vPWT}')
    A(f'v_mov_b32 v{vChk}, 0')
    stamp()
    if delay:
        A(f's_cmp_ge_u32 s{sW}, 4')
        A('s_cbranch_scc1 L_late')
        A('s_waitcnt vmcnt(13)')
        A('s_barrier')
        A('s_branch L_go')
        A('L_late:')
        A('s_waitcnt vmcnt(0)')
        A('s_barrier')
        A('L_redma:')
        A2 = Asm()
        edma()
        A('L_go:')
    else:
        A('s_waitcnt vmcnt(13)')
        A('s_barrier')
        A('s_branch L_go')
        A('L_redma:')
        edma()
        A('L_go:')
    A('s_waitcnt vmcnt(13)')
    stamp()
    pro = []
    for (Wb, mat, va) in ((WK, 1, vWa), (WV, 2, vWb), (WQ, 0, vWa), (WR, 3, vWb)):
        for s in range(4):
            for z in range(2):
                pro.append(f'ds_read_b64_tr_b16 {vr(Wb+4*s+2*z,2)}, v{va} offset:{LDS_W + mat*8192 + s*1024 + z*256}')

    M32 = 'v_mfma_f32_32x32x16_bf16'; M16 = 'v_mfma_f32_16x16x32_bf16'
    M32h = 'v_mfma_f32_32x32x8_bf16'; M16h = 'v_mfma_f32_16x16x16_bf16'
    def chain(op, D, nd, pairs, w=4):
        out = []
        for k, (a, b) in enumerate(pairs):
            cc = '0' if k == 0 else vr(D, nd)
            out.append(f'{op} {vr(D,nd)}, {vr(a,w)}, {vr(b,w)}, {cc}')
        return out
    def cvt(dst, src, n):
        return [f'v_cvt_pk_bf16_f32 v{dst+x}, v{src+2*x}, v{src+2*x+1}' for x in range(n)]
    def scale(src, n):
        return [f'v_mul_f32 v{src+x}, s{sC}, v{src+x}' for x in range(n)]
    def eread(t, after=None):
        aft = f' ;;after v{after}' if after is not None else ''
        if t == 3:
            return [f's_waitcnt vmcnt(12){aft}'] + [f'ds_read_b128 {vr(ET+4*s,4)}, v{vETA[s]}' for s in range(4)]
        return [f's_waitcnt vmcnt({8-4*t}){aft}'] + [f'ds_read_b128 {vr(E[t]+4*s,4)}, v{vEA[s]} offset:{4096*t}' for s in range(4)]

    P = list(pro)
    P += eread(3)
    tb = K[1]
    P += chain(M32, TA, 16, [(WK+4*s, ET+4*s) for s in range(4)]) + cvt(KT, TA, 8)
    P += chain(M16, RT, 4, [(ET+4*s, WV+4*s) for s in range(4)]) + [f'v_cvt_pk_bf16_f32 v{VT}, v{RT}, v{RT+1}']
    x = chain(M32, tb, 16, [(WQ+4*s, ET+4*s) for s in range(4)])
    P += x[:1] + eread(0, tb) + x[1:] + scale(tb, 16) + cvt(QT, tb, 8)
    P += chain(M16, RT, 4, [(ET+4*s, WR+4*s) for s in range(4)])
    temps = {0: (TA, K[1], K[2]), 1: (TA, K[2], TA), 2: (TA, WK, WV)}
    for t in range(3):
        ta, tb, tc = temps[t]
        P += chain(M32, ta, 16, [(WK+4*s, E[t]+4*s) for s in range(4)]) + cvt(K[t], ta, 8)
        P += chain(M32, tb, 16, [(E[t]+4*s, WV+4*s) for s in range(4)]) + cvt(V[t], tb, 8)
        P += chain(M32, tc, 16, [(WQ+4*s, E[t]+4*s) for s in range(4)]) + scale(tc, 16) + cvt(Q[t], tc, 8)
        x = chain(M32, RES[t], 16, [(WR+4*s, E[t]+4*s) for s in range(4)])
        if t < 2: P += x[:1] + eread(t+1, RES[t]) + x[1:]
        else: P += x
    P += [f'v_lshrrev_b32 v{vT0}, 2, v{vLane}', f'v_xor_b32 v{vT0}, v{vT0}, v{vLane}', f'v_and_b32 v{vT0}, 4, v{vT0}',
          f'v_cmp_eq_u32 vcc, 0, v{vT0}', f'v_mov_b32 v{vT1}, 0x3f803f80',
          f'v_cndmask_b32 v{ONES}, 0, v{vT1}, vcc'] + [f'v_mov_b32 v{ONES+k}, v{ONES}' for k in (1, 2, 3)]
    P += [f'v_xor_b32 v{vLane}, 32, v{vOW}']

    def body(safe):
        X = []
        def smm(t, g):
            if g < 3: return chain(M32, S[g], 16, [(K[g]+4*u, Q[t]+4*u) for u in range(2)])
            return chain(M16, SGT, 4, [(KT+4*u, Q[t]+4*u) for u in range(2)])
        for t in range(3):
            ctx = CTX[t & 1]; l = L[t & 1]
            for g in range(4): X += smm(t, g)
            if safe:
                m = vT0
                regs = [S[g]+r for g in range(3) for r in range(16)] + [SGT, SGT+1]
                X.append(f'v_max_f32 v{m}, v{regs[0]}, v{regs[1]}')
                for k in range(2, 50, 2): X.append(f'v_max3_f32 v{m}, v{regs[k]}, v{regs[k+1]}, v{m}')
                X.append(f'v_mov_b32 v{vT1}, v{m}')
                X.append(f'v_permlane32_swap_b32 v{m}, v{vT1}')
                X.append(f'v_max_f32 v{m}, v{m}, v{vT1}')
                for r in regs: X.append(f'v_sub_f32 v{r}, v{r}, v{m}')
            X += [f'v_exp_f32 v{SGT}, v{SGT}', f'v_exp_f32 v{SGT+1}, v{SGT+1}', f'v_cvt_pk_bf16_f32 v{PT}, v{SGT}, v{SGT+1}']
            X.append(f'{M32h} {vr(ctx,16)}, {vr(VT,2)}, {vr(PT,2)}, 0')
            X.append(f'{M16h} {vr(l,4)}, {vr(ONES,2)}, {vr(PT,2)}, 0')
            for g in range(3):
                for u in range(2):
                    b = S[g] + 8*u
                    X += [f'v_exp_f32 v{b+r}, v{b+r}' for r in range(8)]
                    X += cvt(b, b, 4)
                    X.append(f'{M32} {vr(ctx,16)}, {vr(V[g]+4*u,4)}, {vr(b,4)}, {vr(ctx,16)}')
                    X.append(f'{M16} {vr(l,4)}, {vr(ONES,4)}, {vr(b,4)}, {vr(l,4)}')
            X.append(f'v_rcp_f32 v{l+1}, v{l}')
            if not safe:
                X.append(f'v_subrev_u32 v{l+2}, s{sLO}, v{l}')
                X.append(f'v_max_u32 v{vChk}, v{vChk}, v{l+2}')
            X += [f'v_fma_f32 v{ctx+r}, v{ctx+r}, v{l+1}, v{RES[t]+r}' for r in range(16)]
            X += cvt(ctx, ctx, 8)
            X += [f'v_pk_max_i16 v{ctx+r}, v{ctx+r}, 0' for r in range(8)]
            X.append(f'ds_write_b128 v{vOW}, {vr(ctx,4)} offset:{OOFF+2048*t}')
            X.append(f'ds_write_b128 v{vLane}, {vr(ctx+4,4)} offset:{OOFF+2048*t}')
            for y in range(2):
                X.append(f'ds_read_b128 {vr(ctx+8+4*y,4)}, v{vOR} offset:{OOFF+2048*t+1024*y}')
            so = ['0', f's{s4096}', f's{s8192}'][t]
            for y in range(2):
                X.append(f'buffer_store_dwordx4 {vr(ctx+8+4*y,4)}, v{vOffO}, s[{SRD_O}:{SRD_O+3}], {so} offen offset:{2048*y}{stpol}')
        SF = RES[0]; PS = RES[1]; ONA = Q[0]; CT = Q[1]; LT = Q[1] + 4
        for g in range(4):
            kb = K[g] if g < 3 else KT
            X += chain(M16, SF+4*g, 4, [(QT+4*u, kb+4*u) for u in range(2)])
        if safe:
            X.append(f'v_and_b32 v{vT0}, 0x16, v{vI}')
            X.append(f'v_cmp_eq_u32 vcc, 0, v{vT0}')
            for r in range(2):
                m = vT0 if r == 0 else vT1
                X.append(f'v_cndmask_b32 v{m}, v{SF+r}, v{SF+12+r}, vcc')
                X.append(f'v_max3_f32 v{m}, v{m}, v{SF+r}, v{SF+4+r}')
                X.append(f'v_max_f32 v{m}, v{m}, v{SF+8+r}')
                for sh in (1, 2, 4, 8):
                    X.append(f'v_max_f32_dpp v{m}, v{m}, v{m} row_ror:{sh} row_mask:0xf bank_mask:0xf')
                X.append(f'v_mov_b32 v{SF+2}, v{m}')
                X.append(f'v_permlane16_swap_b32 v{m}, v{SF+2}')
                X.append(f'v_max_f32 v{m}, v{m}, v{SF+2}')
                for g in range(4):
                    X.append(f'v_sub_f32 v{SF+4*g+r}, v{SF+4*g+r}, v{m}')
                X.append(f'v_min_f32 v{SF+12+r}, 0, v{SF+12+r}')
        for g in range(4):
            b = SF + 4*g
            X += [f'v_exp_f32 v{b}, v{b}', f'v_exp_f32 v{b+1}, v{b+1}', f'v_cvt_pk_bf16_f32 v{b}, v{b}, v{b+1}']
            va, off = (vPW, 64*g) if g < 3 else (vPWT, 0)
            X.append(f'ds_write_b16 v{va}, v{b} offset:{off}')
            X.append(f'ds_write_b16_d16_hi v{va}, v{b} offset:{off+256}')
        X.append(f'ds_read_b64 {vr(PS+24,2)}, v{vPR} offset:192')
        for ks in range(6):
            X.append(f'ds_read_b128 {vr(PS+4*ks,4)}, v{vPR} offset:{32*ks}')
        X += [f'v_mov_b32 v{ONA+k}, 0x3f803f80' for k in range(5)] + [f'v_mov_b32 v{ONA+5}, 0']
        X.append(f'{M16h} {vr(CT,4)}, {vr(PS+24,2)}, {vr(VT,2)}, 0')
        X.append(f'{M16h} {vr(LT,4)}, {vr(PS+24,2)}, {vr(ONA+4,2)}, 0')
        for ks in range(6):
            X.append(f'{M16} {vr(CT,4)}, {vr(PS+4*ks,4)}, {vr(V[ks>>1]+4*(ks&1),4)}, {vr(CT,4)}')
            X.append(f'{M16} {vr(LT,4)}, {vr(PS+4*ks,4)}, {vr(ONA,4)}, {vr(LT,4)}')
        for r in range(2):
            X.append(f'v_rcp_f32 v{LT+2+r}, v{LT+r}')
            if not safe:
                X.append(f'v_subrev_u32 v{LT+r}, s{sLO}, v{LT+r}')
                X.append(f'v_max_u32 v{vChk}, v{vChk}, v{LT+r}')
            X.append(f'v_fma_f32 v{CT+r}, v{CT+r}, v{LT+2+r}, v{RT+r}')
        X.append(f'v_cvt_pk_bf16_f32 v{CT}, v{CT}, v{CT+1}')
        X.append(f'v_pk_max_i16 v{CT}, v{CT}, 0')
        X.append(f'buffer_store_short v{CT}, v{vOffOT}, s[{SRD_O}:{SRD_O+3}], 0 offen{stpol}')
        X.append(f'buffer_store_short_d16_hi v{CT}, v{vOffOT}, s[{SRD_O}:{SRD_O+3}], 0 offen offset:128{stpol}')
        return X

    A.extend(schedule(P, verbose=True, window=60))
    A('s_nop 15')
    stamp()
    A(f's_cmp_lg_u32 s{sSafe}, 0')
    A('s_cbranch_scc1 L_safe')
    fast = schedule(body(False), verbose=True, window=opts.get('window', 150))
    A.extend(fast)
    stamp()
    if opts.get('stamps'):
        A('s_waitcnt vmcnt(0)')
        stamp()
        A('s_load_dwordx2 s[48:49], s[0:1], 56')
        A('s_waitcnt lgkmcnt(0)')
        A('s_mov_b32 s50, 0x1000000')
        A('s_mov_b32 s51, 0x20000')
        A(f's_lshl_b32 s3, s2, 3')
        A(f's_add_u32 s3, s3, s{sW}')
        A(f's_lshl_b32 s3, s3, 7')
        A(f'v_mov_b32 v{vT0}, s3')
        for k in range(nst[0]):
            A(f'v_mov_b32 v{vT1}, s{64+4*k}')
            A(f'buffer_store_dword v{vT1}, v{vT0}, s[48:51], 0 offen offset:{4*k}')
            A(f'v_mov_b32 v{vT1}, s{66+4*k}')
            A(f'buffer_store_dword v{vT1}, v{vT0}, s[48:51], 0 offen offset:{64+4*k}')
    A(f's_mov_b32 s44, 0x{80<<23:08x}')
    A(f'v_cmp_le_u32 vcc, s44, v{vChk}')
    if opts.get('force_safe'): A('s_mov_b64 vcc, -1')
    A('s_nop 4')
    A('s_cbranch_vccz L_end')
    A(f's_mov_b32 s{sSafe}, 1')
    A('s_waitcnt vmcnt(0) lgkmcnt(0)')
    A('s_nop 15')
    A(f'v_and_b32 v{vLane}, 63, v0')
    A(f'v_lshrrev_b32 v{vT1}, 4, v{vLane}')
    A(f'v_xor_b32 v{vT1}, v{vT1}, v{vLane}')
    A(f'v_and_b32 v{vT1}, 7, v{vT1}')
    A(f'v_lshlrev_b32 v{vT1}, 4, v{vT1}')
    A(f'v_lshrrev_b32 v{vD0}, 3, v{vLane}')
    A(f'v_lshl_add_u32 v{vD0}, v{vD0}, 7, v{vT1}')
    A(f'v_xor_b32 v{vD1}, 64, v{vD0}')
    A(f'v_bfe_u32 v{vT0}, v{vI}, 1, 3')
    A(f'v_xor_b32 v{vT0}, v{vT0}, v{vHf}')
    A(f'v_lshlrev_b32 v{vT0}, 4, v{vT0}')
    A(f'v_lshl_add_u32 v{vT0}, v{vI}, 7, v{vT0}')
    A(f'v_add_u32 v{vEA[0]}, s{sEB}, v{vT0}')
    for s in range(1, 4): A(f'v_xor_b32 v{vEA[s]}, {32*s}, v{vEA[0]}')
    A(f'v_bfe_u32 v{vT0}, v{vI}, 3, 1')
    A(f'v_and_b32 v{vT1}, 1, v{vI}')
    A(f'v_lshl_add_u32 v{vT1}, v{vT0}, 1, v{vT1}')
    A(f'v_xor_b32 v{vT0}, v{vT0}, v{vHf}')
    A(f'v_lshlrev_b32 v{vT0}, 4, v{vT0}')
    A(f'v_lshl_add_u32 v{vETA[0]}, v{vT1}, 7, v{vT0}')
    A(f'v_add_u32 v{vETA[0]}, {96*128}, v{vETA[0]}')
    A(f'v_lshrrev_b32 v{vT1}, 2, v{vI}')
    A(f'v_xor_b32 v{vT1}, v{vT1}, v{vI}')
    A(f'v_and_b32 v{vT1}, 4, v{vT1}')
    A(f'v_and_or_b32 v{vT1}, v{vI}, 2, v{vT1}')
    A(f'v_cmp_eq_u32 vcc, 0, v{vT1}')
    A(f'v_mov_b32 v{vT1}, {ZOFF}')
    A(f'v_cndmask_b32 v{vETA[0]}, v{vT1}, v{vETA[0]}, vcc')
    A(f'v_add_u32 v{vETA[0]}, s{sEB}, v{vETA[0]}')
    for s in range(1, 4): A(f'v_xor_b32 v{vETA[s]}, {32*s}, v{vETA[0]}')
    A('s_nop 4')
    A('s_branch L_redma')
    A('L_safe:')
    A('s_waitcnt vmcnt(0) lgkmcnt(0)')
    A('s_nop 15')
    A.extend(body(True))
    A('L_end:')
    A('s_endpgm')
    txt = A.text()
    print('nops inserted:', A.nops, file=sys.stderr)
    out = HEADER + f'; @launch grid=(256,1,1) block=(512,1,1) lds={lds_total}\n'
    out += '.amdgcn_target "amdgcn-amd-amdhsa--gfx950"\n.text\n'
    out += f'.globl {KNAME}\n.p2align 8\n.type {KNAME},@function\n'
    out += txt
    out += f""".section .rodata,"a"
.p2align 6
.amdhsa_kernel {KNAME}
  .amdhsa_next_free_vgpr 256
  .amdhsa_next_free_sgpr 100
  .amdhsa_accum_offset 256
  .amdhsa_group_segment_fixed_size 0
  .amdhsa_kernarg_size 64
  .amdhsa_user_sgpr_count 2
  .amdhsa_user_sgpr_kernarg_segment_ptr 1
  .amdhsa_system_sgpr_workgroup_id_x 1
.end_amdhsa_kernel
"""
    return out

if __name__ == '__main__':
    opts = {}
    outp = sys.argv[1]
    for a in sys.argv[2:]:
        k, v = a.split('=')
        opts[k] = int(v)
    open(outp, 'w').write(gen(opts))
```

```python
import sys, math, struct
from asmlib import *
from gen1 import HEADER, KNAME, f32bits, vr

def gen(opts):
    A = Asm()
    vLane, vI, vHf, vT0, vT1 = 1, 2, 3, 4, 5
    vWa, vWb = 8, 9
    vOW, vOR, vOffO, vOffOT, vPW, vPWT, vPR, vChk = 6, 7, 10, 11, 12, 13, 14, 15
    E = [16, 32, 48]; ET = 64
    WK, WV, WQ, WR = 80, 96, 112, 128
    K = [144, 160, 176]; Q = [152, 168, 184]
    KT, QT = 192, 200
    V = [208, 216, 224]
    VT = 232; PT = 234; RT = 236
    TA = 240
    RES = [ET, E[0], E[1]]
    S = [WK, WV, WQ]
    CTX = [WR, E[2]]
    ONES = 240; SGT = 244; L = [248, 252]
    vEA = [224, 225, 226, 227]; vETA = [228, 229, 230, 231]
    vD0, vD1 = 216, 217
    sW, sB, sH = 16, 17, 18
    SRD_E, SRD_O, SRD_W, SRD_C = 20, 24, 28, 52
    s4096, s8192, sC, sSafe, sLO, sStep, sStep2, sStep3, s12288, sEB = 32, 33, 34, 35, 36, 37, 38, 39, 45, 42
    LDS_W = 0
    LDS_E = 32768
    EBYTES = 13312
    lds_total = LDS_E + 8 * EBYTES
    ZOFF = 12800
    POFF = 8192
    OOFF = 0
    stpol = {0: '', 1: ' nt', 2: ' sc1', 3: ' sc0 sc1', 4: ' sc0 sc1 nt'}[opts.get('stpol', 0)]
    ldpol = {0: '', 1: ' nt'}[opts.get('ldpol', 0)]

    c_scale = math.log2(math.e) / math.sqrt(32.0)
    nst = [0]
    def stamp():
        if not opts.get('stamps'): return
        k = nst[0]; nst[0] += 1
        A(f's_memtime s[{64+4*k}:{65+4*k}]')
        A(f's_memrealtime s[{66+4*k}:{67+4*k}]')

    A(f'{KNAME}:')
    stamp()
    if opts.get('dbg'):
        A('s_memtime s[64:65]')
        A('s_memrealtime s[66:67]')
    A('s_cmp_ge_u32 s2, 256')
    A('s_cbranch_scc1 L_end')
    A('s_load_dwordx8 s[4:11], s[0:1], 0')
    A('s_load_dwordx4 s[12:15], s[0:1], 32')
    npre = 0
    if opts.get('prefetch', 1):
        A(f's_getpc_b64 s[{SRD_C}:{SRD_C+1}]')
        A('L_pc:')
        A(f's_mov_b32 s{SRD_C+2}, L_safe-L_pc')
        A(f's_mov_b32 s{SRD_C+3}, 0x20000')
        A(f'v_lshlrev_b32 v{vT0}, 6, v0')
        A(f'buffer_load_dword v{RT}, v{vT0}, s[{SRD_C}:{SRD_C+3}], 0 offen')
        npre = 1
    A(f'v_lshrrev_b32 v{vT0}, 6, v0')
    A(f'v_and_b32 v{vLane}, 63, v0')
    A(f'v_readfirstlane_b32 s{sW}, v{vT0}')
    A(f'v_and_b32 v{vI}, 31, v0')
    A(f'v_bfe_u32 v{vHf}, v0, 5, 1')
    A(f's_mov_b32 s{s4096}, 4096')
    A(f's_mov_b32 s{s8192}, 8192')
    A(f's_mov_b32 s{s12288}, 12288')
    A(f's_mov_b32 s{sC}, 0x{f32bits(c_scale):08x}')
    A(f's_mov_b32 s{sSafe}, 0')
    A(f's_mov_b32 s{sLO}, 0x{(127-40)<<23:08x}')
    A(f's_lshr_b32 s{sB}, s{sW}, 1')
    A(f's_and_b32 s{sH}, s{sW}, 1')
    A(f's_cmp_eq_u32 s{sB}, 3')
    A(f's_cselect_b32 s{sStep}, 1024, 0')
    A(f's_cselect_b32 s{sStep2}, 2048, 0')
    A(f's_cselect_b32 s{sStep3}, 3072, 0')
    A(f's_cselect_b32 s40, 64, 4096')
    A(f's_cselect_b32 s41, 7, 6')
    A(f's_mul_i32 s40, s40, s{sH}')
    A(f'v_lshrrev_b32 v{vT0}, 2, v{vLane}')
    A(f'v_lshlrev_b32 v{vT0}, s41, v{vT0}')
    A(f'v_and_b32 v{vT1}, 3, v{vLane}')
    A(f'v_lshl_add_u32 v{vT0}, v{vT1}, 4, v{vT0}')
    A(f'v_add_u32 v{vT0}, s40, v{vT0}')
    A(f's_lshl_b32 m0, s{sW}, 12')
    A(f'v_lshrrev_b32 v{vT1}, 4, v{vLane}')
    A(f'v_xor_b32 v{vT1}, v{vT1}, v{vLane}')
    A(f'v_and_b32 v{vT1}, 7, v{vT1}')
    A(f'v_lshlrev_b32 v{vT1}, 4, v{vT1}')
    A(f'v_lshrrev_b32 v{vD0}, 3, v{vLane}')
    A(f'v_lshl_add_u32 v{vD0}, v{vD0}, 7, v{vT1}')
    A(f'v_xor_b32 v{vD1}, 64, v{vD0}')
    A(f's_mul_i32 s{sEB}, s{sW}, {EBYTES}')
    A(f's_add_u32 s{sEB}, s{sEB}, {LDS_E}')
    A(f's_lshl_b32 s3, s2, 2')
    A(f's_add_u32 s19, s{sB}, s3')
    A(f's_mul_i32 s19, s19, 12800')
    A('s_waitcnt lgkmcnt(0)')
    stamp()
    A(f's_cmp_eq_u32 s{sB}, 1')
    A(f's_cselect_b64 s[{SRD_W}:{SRD_W+1}], s[8:9], s[6:7]')
    A(f's_cmp_eq_u32 s{sB}, 2')
    A(f's_cselect_b64 s[{SRD_W}:{SRD_W+1}], s[10:11], s[{SRD_W}:{SRD_W+1}]')
    A(f's_cmp_eq_u32 s{sB}, 3')
    A(f's_cselect_b64 s[{SRD_W}:{SRD_W+1}], s[12:13], s[{SRD_W}:{SRD_W+1}]')
    A(f's_mov_b32 s{SRD_W+2}, 8192')
    A(f's_mov_b32 s{SRD_W+3}, 0x20000')
    for k, so in enumerate(['0', f's{sStep}', f's{sStep2}', f's{sStep3}']):
        A(f'buffer_load_dwordx4 v{vT0}, s[{SRD_W}:{SRD_W+3}], {so} offen offset:{k*1024} lds')
    A(f's_add_u32 s{SRD_E}, s4, s19')
    A(f's_addc_u32 s{SRD_E+1}, s5, 0')
    A(f's_mov_b32 s{SRD_E+2}, 12800')
    A(f's_mov_b32 s{SRD_E+3}, 0x20000')
    A(f's_add_u32 s{SRD_O}, s14, s19')
    A(f's_addc_u32 s{SRD_O+1}, s15, 0')
    A(f's_mov_b32 s{SRD_O+2}, 12800')
    A(f's_mov_b32 s{SRD_O+3}, 0x20000')
    def edma():
        A(f's_add_u32 m0, s{sEB}, 12288')
        A(f'buffer_load_dwordx4 v{vD0}, s[{SRD_E}:{SRD_E+3}], s{s12288} offen{ldpol} lds')
        for t, so in enumerate(['0', f's{s4096}', f's{s8192}']):
            A(f's_add_u32 m0, s{sEB}, {4096*t}')
            for k in range(4):
                A(f'buffer_load_dwordx4 v{vD1 if k & 1 else vD0}, s[{SRD_E}:{SRD_E+3}], {so} offen offset:{1024*k}{ldpol} lds')
    delay = opts.get('delay', 1)
    if delay:
        A(f's_cmp_ge_u32 s{sW}, 4')
        A('s_cbranch_scc1 L_skip1')
    edma()
    if delay:
        A('L_skip1:')
    A(f'v_bfe_u32 v{vT0}, v{vI}, 1, 3')
    A(f'v_xor_b32 v{vT0}, v{vT0}, v{vHf}')
    A(f'v_lshlrev_b32 v{vT0}, 4, v{vT0}')
    A(f'v_lshl_add_u32 v{vT0}, v{vI}, 7, v{vT0}')
    A(f'v_add_u32 v{vEA[0]}, s{sEB}, v{vT0}')
    for s in range(1, 4): A(f'v_xor_b32 v{vEA[s]}, {32*s}, v{vEA[0]}')
    A(f'v_bfe_u32 v{vT0}, v{vI}, 3, 1')
    A(f'v_and_b32 v{vT1}, 1, v{vI}')
    A(f'v_lshl_add_u32 v{vT1}, v{vT0}, 1, v{vT1}')
    A(f'v_xor_b32 v{vT0}, v{vT0}, v{vHf}')
    A(f'v_lshlrev_b32 v{vT0}, 4, v{vT0}')
    A(f'v_lshl_add_u32 v{vETA[0]}, v{vT1}, 7, v{vT0}')
    A(f'v_add_u32 v{vETA[0]}, {96*128}, v{vETA[0]}')
    A(f'v_lshlrev_b32 v{vPR}, 8, v{vT1}')
    A(f'v_lshl_add_u32 v{vPR}, v{vHf}, 4, v{vPR}')
    A(f'v_add_u32 v{vPR}, {POFF}, v{vPR}')
    A(f'v_lshrrev_b32 v{vT1}, 2, v{vI}')
    A(f'v_xor_b32 v{vT1}, v{vT1}, v{vI}')
    A(f'v_and_b32 v{vT1}, 4, v{vT1}')
    A(f'v_and_or_b32 v{vT1}, v{vI}, 2, v{vT1}')
    A(f'v_cmp_eq_u32 vcc, 0, v{vT1}')
    A(f'v_mov_b32 v{vT1}, {ZOFF}')
    A(f'v_cndmask_b32 v{vETA[0]}, v{vT1}, v{vETA[0]}, vcc')
    A(f'v_cndmask_b32 v{vPR}, v{vT1}, v{vPR}, vcc')
    A(f'v_add_u32 v{vETA[0]}, s{sEB}, v{vETA[0]}')
    A(f'v_add_u32 v{vPR}, s{sEB}, v{vPR}')
    for s in range(1, 4): A(f'v_xor_b32 v{vETA[s]}, {32*s}, v{vETA[0]}')
    A(f'v_mov_b32 v{VT+1}, 0')
    A(f'v_mov_b32 v{PT+1}, 0')
    A(f'v_bfe_u32 v{vT0}, v{vLane}, 2, 2')
    A(f'v_lshl_add_u32 v{vT0}, v{vHf}, 3, v{vT0}')
    A(f'v_lshlrev_b32 v{vT0}, 6, v{vT0}')
    A(f's_lshl_b32 s43, s{sH}, 12')
    A(f'v_add_u32 v{vT0}, s43, v{vT0}')
    A(f'v_bfe_u32 v{vT1}, v{vLane}, 4, 1')
    A(f'v_lshl_add_u32 v{vT0}, v{vT1}, 5, v{vT0}')
    A(f'v_and_b32 v{vT1}, 3, v{vLane}')
    A(f'v_lshl_add_u32 v{vWa}, v{vT1}, 3, v{vT0}')
    A(f'v_and_b32 v{vT1}, 1, v{vLane}')
    A(f'v_lshl_add_u32 v{vWb}, v{vT1}, 4, v{vT0}')
    A(f'v_bfe_u32 v{vT1}, v{vLane}, 1, 1')
    A(f'v_lshl_add_u32 v{vWb}, v{vT1}, 3, v{vWb}')
    A(f'v_bfe_u32 v{vT0}, v{vI}, 1, 2')
    A(f'v_xor_b32 v{vT0}, v{vT0}, v{vHf}')
    A(f'v_lshlrev_b32 v{vT0}, 4, v{vT0}')
    A(f'v_lshl_add_u32 v{vOW}, v{vI}, 6, v{vT0}')
    A(f'v_add_u32 v{vOW}, s{sEB}, v{vOW}')
    A(f'v_lshrrev_b32 v{vT0}, 3, v{vLane}')
    A(f'v_xor_b32 v{vT0}, v{vT0}, v{vLane}')
    A(f'v_and_b32 v{vT0}, 3, v{vT0}')
    A(f'v_lshlrev_b32 v{vT0}, 4, v{vT0}')
    A(f'v_lshrrev_b32 v{vT1}, 2, v{vLane}')
    A(f'v_lshl_add_u32 v{vOR}, v{vT1}, 6, v{vT0}')
    A(f'v_add_u32 v{vOR}, s{sEB}, v{vOR}')
    A(f's_lshl_b32 s43, s{sH}, 6')
    A(f'v_and_b32 v{vT0}, 3, v{vLane}')
    A(f'v_lshlrev_b32 v{vT0}, 4, v{vT0}')
    A(f'v_lshl_add_u32 v{vOffO}, v{vT1}, 7, v{vT0}')
    A(f'v_add_u32 v{vOffO}, s43, v{vOffO}')
    A(f'v_and_b32 v{vT0}, 0x13, v{vI}')
    A(f'v_bfe_u32 v{vT1}, v{vI}, 2, 1')
    A(f'v_lshl_add_u32 v{vT0}, v{vT1}, 3, v{vT0}')
    A(f'v_bfe_u32 v{vT1}, v{vI}, 3, 1')
    A(f'v_lshl_add_u32 v{vT0}, v{vT1}, 2, v{vT0}')
    A(f'v_lshlrev_b32 v{vT0}, 1, v{vT0}')
    A(f'v_lshl_add_u32 v{vOffOT}, v{vHf}, 8, v{vT0}')
    A(f'v_add_u32 v{vOffOT}, s43, v{vOffOT}')
    A(f'v_add_u32 v{vOffOT}, {96*128}, v{vOffOT}')
    A(f's_add_u32 s43, s{sEB}, {POFF}')
    A(f'v_lshl_add_u32 v{vPW}, v{vHf}, 9, v{vT0}')
    A(f'v_add_u32 v{vPW}, s43, v{vPW}')
    A(f'v_bfe_u32 v{vT0}, v{vI}, 3, 1')
    A(f'v_and_b32 v{vT1}, 3, v{vI}')
    A(f'v_lshl_add_u32 v{vT0}, v{vT0}, 3, v{vT1}')
    A(f'v_lshlrev_b32 v{vT0}, 1, v{vT0}')
    A(f'v_add_u32 v{vT0}, 192, v{vT0}')
    A(f'v_and_b32 v{vT1}, 0x14, v{vI}')
    A(f'v_cmp_eq_u32 vcc, 0, v{vT1}')
    A(f'v_mov_b32 v{vT1}, 240')
    A(f'v_cndmask_b32 v{vT0}, v{vT1}, v{vT0}, vcc')
    A(f'v_lshl_add_u32 v{vPWT}, v{vHf}, 9, v{vT0}')
    A(f'v_add_u32 v{vPWT}, s43, v{vPWT}')
    A(f'v_mov_b32 v{vChk}, 0')
    stamp()
    if delay:
        A(f's_cmp_ge_u32 s{sW}, 4')
        A('s_cbranch_scc1 L_late')
        A('s_waitcnt vmcnt(13)')
        A('s_barrier')
        A('s_branch L_go')
        A('L_late:')
        A('s_waitcnt vmcnt(0)')
        A('s_barrier')
        A('L_redma:')
        A2 = Asm()
        edma()
        A('L_go:')
    else:
        A('s_waitcnt vmcnt(13)')
        A('s_barrier')
        A('s_branch L_go')
        A('L_redma:')
        edma()
        A('L_go:')
    A('s_waitcnt vmcnt(13)')
    stamp()
    pro = []
    for (Wb, mat, va) in ((WK, 1, vWa), (WV, 2, vWb), (WQ, 0, vWa), (WR, 3, vWb)):
        for s in range(4):
            for z in range(2):
                pro.append(f'ds_read_b64_tr_b16 {vr(Wb+4*s+2*z,2)}, v{va} offset:{LDS_W + mat*8192 + s*1024 + z*256}')

    M32 = 'v_mfma_f32_32x32x16_bf16'; M16 = 'v_mfma_f32_16x16x32_bf16'
    M32h = 'v_mfma_f32_32x32x8_bf16'; M16h = 'v_mfma_f32_16x16x16_bf16'
    def chain(op, D, nd, pairs, w=4):
        out = []
        for k, (a, b) in enumerate(pairs):
            cc = '0' if k == 0 else vr(D, nd)
            out.append(f'{op} {vr(D,nd)}, {vr(a,w)}, {vr(b,w)}, {cc}')
        return out
    def cvt(dst, src, n):
        return [f'v_cvt_pk_bf16_f32 v{dst+x}, v{src+2*x}, v{src+2*x+1}' for x in range(n)]
    def scale(src, n):
        return [f'v_mul_f32 v{src+x}, s{sC}, v{src+x}' for x in range(n)]
    def eread(t, after=None):
        aft = f' ;;after v{after}' if after is not None else ''
        if t == 3:
            return [f's_waitcnt vmcnt(12){aft}'] + [f'ds_read_b128 {vr(ET+4*s,4)}, v{vETA[s]}' for s in range(4)]
        return [f's_waitcnt vmcnt({8-4*t}){aft}'] + [f'ds_read_b128 {vr(E[t]+4*s,4)}, v{vEA[s]} offset:{4096*t}' for s in range(4)]

    P = list(pro)
    P += eread(3)
    tb = K[1]
    P += chain(M32, TA, 16, [(WK+4*s, ET+4*s) for s in range(4)]) + cvt(KT, TA, 8)
    P += chain(M16, RT, 4, [(ET+4*s, WV+4*s) for s in range(4)]) + [f'v_cvt_pk_bf16_f32 v{VT}, v{RT}, v{RT+1}']
    x = chain(M32, tb, 16, [(WQ+4*s, ET+4*s) for s in range(4)])
    P += x[:1] + eread(0, tb) + x[1:] + scale(tb, 16) + cvt(QT, tb, 8)
    P += chain(M16, RT, 4, [(ET+4*s, WR+4*s) for s in range(4)])
    temps = {0: (TA, K[1], K[2]), 1: (TA, K[2], TA), 2: (TA, WK, WV)}
    for t in range(3):
        ta, tb, tc = temps[t]
        P += chain(M32, ta, 16, [(WK+4*s, E[t]+4*s) for s in range(4)]) + cvt(K[t], ta, 8)
        P += chain(M32, tb, 16, [(E[t]+4*s, WV+4*s) for s in range(4)]) + cvt(V[t], tb, 8)
        P += chain(M32, tc, 16, [(WQ+4*s, E[t]+4*s) for s in range(4)]) + scale(tc, 16) + cvt(Q[t], tc, 8)
        x = chain(M32, RES[t], 16, [(WR+4*s, E[t]+4*s) for s in range(4)])
        if t < 2: P += x[:1] + eread(t+1, RES[t]) + x[1:]
        else: P += x
    P += [f'v_lshrrev_b32 v{vT0}, 2, v{vLane}', f'v_xor_b32 v{vT0}, v{vT0}, v{vLane}', f'v_and_b32 v{vT0}, 4, v{vT0}',
          f'v_cmp_eq_u32 vcc, 0, v{vT0}', f'v_mov_b32 v{vT1}, 0x3f803f80',
          f'v_cndmask_b32 v{ONES}, 0, v{vT1}, vcc'] + [f'v_mov_b32 v{ONES+k}, v{ONES}' for k in (1, 2, 3)]
    P += [f'v_xor_b32 v{vLane}, 32, v{vOW}']

    def body(safe):
        X = []
        def smm(t, g):
            if g < 3: return chain(M32, S[g], 16, [(K[g]+4*u, Q[t]+4*u) for u in range(2)])
            return chain(M16, SGT, 4, [(KT+4*u, Q[t]+4*u) for u in range(2)])
        for t in range(3):
            ctx = CTX[t & 1]; l = L[t & 1]
            for g in range(4): X += smm(t, g)
            if safe:
                m = vT0
                regs = [S[g]+r for g in range(3) for r in range(16)] + [SGT, SGT+1]
                X.append(f'v_max_f32 v{m}, v{regs[0]}, v{regs[1]}')
                for k in range(2, 50, 2): X.append(f'v_max3_f32 v{m}, v{regs[k]}, v{regs[k+1]}, v{m}')
                X.append(f'v_mov_b32 v{vT1}, v{m}')
                X.append(f'v_permlane32_swap_b32 v{m}, v{vT1}')
                X.append(f'v_max_f32 v{m}, v{m}, v{vT1}')
                for r in regs: X.append(f'v_sub_f32 v{r}, v{r}, v{m}')
            X += [f'v_exp_f32 v{SGT}, v{SGT}', f'v_exp_f32 v{SGT+1}, v{SGT+1}', f'v_cvt_pk_bf16_f32 v{PT}, v{SGT}, v{SGT+1}']
            X.append(f'{M32h} {vr(ctx,16)}, {vr(VT,2)}, {vr(PT,2)}, 0')
            X.append(f'{M16h} {vr(l,4)}, {vr(ONES,2)}, {vr(PT,2)}, 0')
            for g in range(3):
                for u in range(2):
                    b = S[g] + 8*u
                    X += [f'v_exp_f32 v{b+r}, v{b+r}' for r in range(8)]
                    X += cvt(b, b, 4)
                    X.append(f'{M32} {vr(ctx,16)}, {vr(V[g]+4*u,4)}, {vr(b,4)}, {vr(ctx,16)}')
                    X.append(f'{M16} {vr(l,4)}, {vr(ONES,4)}, {vr(b,4)}, {vr(l,4)}')
            X.append(f'v_rcp_f32 v{l+1}, v{l}')
            if not safe:
                X.append(f'v_subrev_u32 v{l+2}, s{sLO}, v{l}')
                X.append(f'v_max_u32 v{vChk}, v{vChk}, v{l+2}')
            X += [f'v_fma_f32 v{ctx+r}, v{ctx+r}, v{l+1}, v{RES[t]+r}' for r in range(16)]
            X += cvt(ctx, ctx, 8)
            X += [f'v_pk_max_i16 v{ctx+r}, v{ctx+r}, 0' for r in range(8)]
            X.append(f'ds_write_b128 v{vOW}, {vr(ctx,4)} offset:{OOFF+2048*t}')
            X.append(f'ds_write_b128 v{vLane}, {vr(ctx+4,4)} offset:{OOFF+2048*t}')
            for y in range(2):
                X.append(f'ds_read_b128 {vr(ctx+8+4*y,4)}, v{vOR} offset:{OOFF+2048*t+1024*y}')
            so = ['0', f's{s4096}', f's{s8192}'][t]
            for y in range(2):
                X.append(f'buffer_store_dwordx4 {vr(ctx+8+4*y,4)}, v{vOffO}, s[{SRD_O}:{SRD_O+3}], {so} offen offset:{2048*y}{stpol}')
        SF = RES[0]; PS = RES[1]; ONA = Q[0]; CT = Q[1]; LT = Q[1] + 4
        for g in range(4):
            kb = K[g] if g < 3 else KT
            X += chain(M16, SF+4*g, 4, [(QT+4*u, kb+4*u) for u in range(2)])
        if safe:
            X.append(f'v_and_b32 v{vT0}, 0x16, v{vI}')
            X.append(f'v_cmp_eq_u32 vcc, 0, v{vT0}')
            for r in range(2):
                m = vT0 if r == 0 else vT1
                X.append(f'v_cndmask_b32 v{m}, v{SF+r}, v{SF+12+r}, vcc')
                X.append(f'v_max3_f32 v{m}, v{m}, v{SF+r}, v{SF+4+r}')
                X.append(f'v_max_f32 v{m}, v{m}, v{SF+8+r}')
                for sh in (1, 2, 4, 8):
                    X.append(f'v_max_f32_dpp v{m}, v{m}, v{m} row_ror:{sh} row_mask:0xf bank_mask:0xf')
                X.append(f'v_mov_b32 v{SF+2}, v{m}')
                X.append(f'v_permlane16_swap_b32 v{m}, v{SF+2}')
                X.append(f'v_max_f32 v{m}, v{m}, v{SF+2}')
                for g in range(4):
                    X.append(f'v_sub_f32 v{SF+4*g+r}, v{SF+4*g+r}, v{m}')
                X.append(f'v_min_f32 v{SF+12+r}, 0, v{SF+12+r}')
        for g in range(4):
            b = SF + 4*g
            X += [f'v_exp_f32 v{b}, v{b}', f'v_exp_f32 v{b+1}, v{b+1}', f'v_cvt_pk_bf16_f32 v{b}, v{b}, v{b+1}']
            va, off = (vPW, 64*g) if g < 3 else (vPWT, 0)
            X.append(f'ds_write_b16 v{va}, v{b} offset:{off}')
            X.append(f'ds_write_b16_d16_hi v{va}, v{b} offset:{off+256}')
        X.append(f'ds_read_b64 {vr(PS+24,2)}, v{vPR} offset:192')
        for ks in range(6):
            X.append(f'ds_read_b128 {vr(PS+4*ks,4)}, v{vPR} offset:{32*ks}')
        X += [f'v_mov_b32 v{ONA+k}, 0x3f803f80' for k in range(5)] + [f'v_mov_b32 v{ONA+5}, 0']
        X.append(f'{M16h} {vr(CT,4)}, {vr(PS+24,2)}, {vr(VT,2)}, 0')
        X.append(f'{M16h} {vr(LT,4)}, {vr(PS+24,2)}, {vr(ONA+4,2)}, 0')
        for ks in range(6):
            X.append(f'{M16} {vr(CT,4)}, {vr(PS+4*ks,4)}, {vr(V[ks>>1]+4*(ks&1),4)}, {vr(CT,4)}')
            X.append(f'{M16} {vr(LT,4)}, {vr(PS+4*ks,4)}, {vr(ONA,4)}, {vr(LT,4)}')
        for r in range(2):
            X.append(f'v_rcp_f32 v{LT+2+r}, v{LT+r}')
            if not safe:
                X.append(f'v_subrev_u32 v{LT+r}, s{sLO}, v{LT+r}')
                X.append(f'v_max_u32 v{vChk}, v{vChk}, v{LT+r}')
            X.append(f'v_fma_f32 v{CT+r}, v{CT+r}, v{LT+2+r}, v{RT+r}')
        X.append(f'v_cvt_pk_bf16_f32 v{CT}, v{CT}, v{CT+1}')
        X.append(f'v_pk_max_i16 v{CT}, v{CT}, 0')
        X.append(f'buffer_store_short v{CT}, v{vOffOT}, s[{SRD_O}:{SRD_O+3}], 0 offen{stpol}')
        X.append(f'buffer_store_short_d16_hi v{CT}, v{vOffOT}, s[{SRD_O}:{SRD_O+3}], 0 offen offset:128{stpol}')
        return X

    A.extend(schedule(P, verbose=True, window=60))
    A('s_nop 15')
    stamp()
    A(f's_cmp_lg_u32 s{sSafe}, 0')
    A('s_cbranch_scc1 L_safe')
    fast = schedule(body(False), verbose=True, window=opts.get('window', 150))
    A.extend(fast)
    stamp()
    if opts.get('stamps'):
        A('s_waitcnt vmcnt(0)')
        stamp()
        A('s_load_dwordx2 s[48:49], s[0:1], 56')
        A('s_waitcnt lgkmcnt(0)')
        A('s_mov_b32 s50, 0x1000000')
        A('s_mov_b32 s51, 0x20000')
        A(f's_lshl_b32 s3, s2, 3')
        A(f's_add_u32 s3, s3, s{sW}')
        A(f's_lshl_b32 s3, s3, 7')
        A(f'v_mov_b32 v{vT0}, s3')
        for k in range(nst[0]):
            A(f'v_mov_b32 v{vT1}, s{64+4*k}')
            A(f'buffer_store_dword v{vT1}, v{vT0}, s[48:51], 0 offen offset:{4*k}')
            A(f'v_mov_b32 v{vT1}, s{66+4*k}')
            A(f'buffer_store_dword v{vT1}, v{vT0}, s[48:51], 0 offen offset:{64+4*k}')
    if opts.get('dbg'):
        A('s_waitcnt vmcnt(0)')
        A('s_memtime s[68:69]')
        A('s_memrealtime s[70:71]')
        A('s_load_dwordx2 s[48:49], s[0:1], 48')
        A('s_waitcnt lgkmcnt(0)')
        A('s_mov_b32 s50, 256')
        A('s_mov_b32 s51, 0x20000')
        A('s_and_b32 s72, s2, 63')
        A('s_cmp_lg_u32 s72, 63')
        A('s_cbranch_scc1 L_nodbg')
        A(f's_cmp_lg_u32 s{sW}, 7')
        A('s_cbranch_scc1 L_nodbg')
        A('s_lshr_b32 s72, s2, 6')
        A('s_lshl_b32 s72, s72, 4')
        A(f'v_mov_b32 v{vT0}, s72')
        A('s_sub_u32 s73, s68, s64')
        A('s_sub_u32 s74, s70, s66')
        A(f'v_mov_b32 v{RT}, s66')
        A(f'v_mov_b32 v{RT+1}, s70')
        A(f'v_mov_b32 v{RT+2}, s73')
        A(f'v_mov_b32 v{RT+3}, s74')
        A(f'buffer_store_dwordx4 v[{RT}:{RT+3}], v{vT0}, s[48:51], 0 offen')
        A('L_nodbg:')
    A(f's_mov_b32 s44, 0x{80<<23:08x}')
    A(f'v_cmp_le_u32 vcc, s44, v{vChk}')
    if opts.get('force_safe'): A('s_mov_b64 vcc, -1')
    A('s_nop 4')
    A('s_cbranch_vccz L_end')
    A(f's_mov_b32 s{sSafe}, 1')
    A('s_waitcnt vmcnt(0) lgkmcnt(0)')
    A('s_nop 15')
    A(f'v_and_b32 v{vLane}, 63, v0')
    A(f'v_lshrrev_b32 v{vT1}, 4, v{vLane}')
    A(f'v_xor_b32 v{vT1}, v{vT1}, v{vLane}')
    A(f'v_and_b32 v{vT1}, 7, v{vT1}')
    A(f'v_lshlrev_b32 v{vT1}, 4, v{vT1}')
    A(f'v_lshrrev_b32 v{vD0}, 3, v{vLane}')
    A(f'v_lshl_add_u32 v{vD0}, v{vD0}, 7, v{vT1}')
    A(f'v_xor_b32 v{vD1}, 64, v{vD0}')
    A(f'v_bfe_u32 v{vT0}, v{vI}, 1, 3')
    A(f'v_xor_b32 v{vT0}, v{vT0}, v{vHf}')
    A(f'v_lshlrev_b32 v{vT0}, 4, v{vT0}')
    A(f'v_lshl_add_u32 v{vT0}, v{vI}, 7, v{vT0}')
    A(f'v_add_u32 v{vEA[0]}, s{sEB}, v{vT0}')
    for s in range(1, 4): A(f'v_xor_b32 v{vEA[s]}, {32*s}, v{vEA[0]}')
    A(f'v_bfe_u32 v{vT0}, v{vI}, 3, 1')
    A(f'v_and_b32 v{vT1}, 1, v{vI}')
    A(f'v_lshl_add_u32 v{vT1}, v{vT0}, 1, v{vT1}')
    A(f'v_xor_b32 v{vT0}, v{vT0}, v{vHf}')
    A(f'v_lshlrev_b32 v{vT0}, 4, v{vT0}')
    A(f'v_lshl_add_u32 v{vETA[0]}, v{vT1}, 7, v{vT0}')
    A(f'v_add_u32 v{vETA[0]}, {96*128}, v{vETA[0]}')
    A(f'v_lshrrev_b32 v{vT1}, 2, v{vI}')
    A(f'v_xor_b32 v{vT1}, v{vT1}, v{vI}')
    A(f'v_and_b32 v{vT1}, 4, v{vT1}')
    A(f'v_and_or_b32 v{vT1}, v{vI}, 2, v{vT1}')
    A(f'v_cmp_eq_u32 vcc, 0, v{vT1}')
    A(f'v_mov_b32 v{vT1}, {ZOFF}')
    A(f'v_cndmask_b32 v{vETA[0]}, v{vT1}, v{vETA[0]}, vcc')
    A(f'v_add_u32 v{vETA[0]}, s{sEB}, v{vETA[0]}')
    for s in range(1, 4): A(f'v_xor_b32 v{vETA[s]}, {32*s}, v{vETA[0]}')
    A('s_nop 4')
    A('s_branch L_redma')
    A('L_safe:')
    A('s_waitcnt vmcnt(0) lgkmcnt(0)')
    A('s_nop 15')
    A.extend(body(True))
    A('L_end:')
    A('s_endpgm')
    txt = A.text()
    print('nops inserted:', A.nops, file=sys.stderr)
    out = HEADER + f'; @launch grid=(256,1,1) block=(512,1,1) lds={lds_total}\n'
    out += '.amdgcn_target "amdgcn-amd-amdhsa--gfx950"\n.text\n'
    out += f'.globl {KNAME}\n.p2align 8\n.type {KNAME},@function\n'
    out += txt
    out += f""".section .rodata,"a"
.p2align 6
.amdhsa_kernel {KNAME}
  .amdhsa_next_free_vgpr 256
  .amdhsa_next_free_sgpr 100
  .amdhsa_accum_offset 256
  .amdhsa_group_segment_fixed_size 0
  .amdhsa_kernarg_size 64
  .amdhsa_user_sgpr_count 2
  .amdhsa_user_sgpr_kernarg_segment_ptr 1
  .amdhsa_system_sgpr_workgroup_id_x 1
.end_amdhsa_kernel
"""
    return out

if __name__ == '__main__':
    opts = {}
    outp = sys.argv[1]
    for a in sys.argv[2:]:
        k, v = a.split('=')
        opts[k] = int(v)
    open(outp, 'w').write(gen(opts))
```

```python
import sys, math, struct
from asmlib import *
from gen1 import HEADER, KNAME, f32bits, vr

def gen(opts):
    A = Asm()
    vLane, vI, vHf, vT0, vT1 = 1, 2, 3, 4, 5
    vWa, vWb = 8, 9
    vOW, vOR, vOffO, vOffOT, vPW, vPWT, vPR, vChk = 6, 7, 10, 11, 12, 13, 14, 15
    E = [16, 32, 48]; ET = 64
    WK, WV, WQ, WR = 80, 96, 112, 128
    K = [144, 160, 176]; Q = [152, 168, 184]
    KT, QT = 192, 200
    V = [208, 216, 224]
    VT = 232; PT = 234; RT = 236
    TA = 240
    RES = [ET, E[0], E[1]]
    S = [WK, WV, WQ]
    CTX = [WR, E[2]]
    ONES = 240; SGT = 244; L = [248, 252]
    vEA = [224, 225, 226, 227]; vETA = [228, 229, 230, 231]
    vD0, vD1 = 216, 217
    sW, sB, sH = 16, 17, 18
    SRD_E, SRD_O, SRD_W, SRD_C = 20, 24, 28, 52
    s4096, s8192, sC, sSafe, sLO, sStep, sStep2, sStep3, s12288, sEB = 32, 33, 34, 35, 36, 37, 38, 39, 45, 42
    LDS_W = 0
    LDS_E = 32768
    EBYTES = 13312
    lds_total = LDS_E + 8 * EBYTES
    ZOFF = 12800
    POFF = 8192
    OOFF = 0
    stpol = {0: '', 1: ' nt', 2: ' sc1', 3: ' sc0 sc1', 4: ' sc0 sc1 nt'}[opts.get('stpol', 0)]
    ldpol = {0: '', 1: ' nt'}[opts.get('ldpol', 0)]

    c_scale = math.log2(math.e) / math.sqrt(32.0)
    nst = [0]
    def stamp():
        if not opts.get('stamps'): return
        k = nst[0]; nst[0] += 1
        A(f's_memtime s[{64+4*k}:{65+4*k}]')
        A(f's_memrealtime s[{66+4*k}:{67+4*k}]')

    A(f'{KNAME}:')
    stamp()
    if opts.get('dbg'):
        A('s_memtime s[64:65]')
        A('s_memrealtime s[66:67]')
    if opts.get('dbl') or opts.get('spin'):
        A('s_memrealtime s[90:91]')
    A('s_cmp_ge_u32 s2, 256')
    A('s_cbranch_scc1 L_end')
    A('s_load_dwordx8 s[4:11], s[0:1], 0')
    A('s_load_dwordx4 s[12:15], s[0:1], 32')
    npre = 0
    if opts.get('prefetch', 1):
        A(f's_getpc_b64 s[{SRD_C}:{SRD_C+1}]')
        A('L_pc:')
        A(f's_mov_b32 s{SRD_C+2}, L_safe-L_pc')
        A(f's_mov_b32 s{SRD_C+3}, 0x20000')
        A(f'v_lshlrev_b32 v{vT0}, 6, v0')
        A(f'buffer_load_dword v{RT}, v{vT0}, s[{SRD_C}:{SRD_C+3}], 0 offen')
        npre = 1
    A(f'v_lshrrev_b32 v{vT0}, 6, v0')
    A(f'v_and_b32 v{vLane}, 63, v0')
    A(f'v_readfirstlane_b32 s{sW}, v{vT0}')
    A(f'v_and_b32 v{vI}, 31, v0')
    A(f'v_bfe_u32 v{vHf}, v0, 5, 1')
    A(f's_mov_b32 s{s4096}, 4096')
    A(f's_mov_b32 s{s8192}, 8192')
    A(f's_mov_b32 s{s12288}, 12288')
    A(f's_mov_b32 s{sC}, 0x{f32bits(c_scale):08x}')
    A(f's_mov_b32 s{sSafe}, 0')
    A(f's_mov_b32 s{sLO}, 0x{(127-40)<<23:08x}')
    A(f's_lshr_b32 s{sB}, s{sW}, 1')
    A(f's_and_b32 s{sH}, s{sW}, 1')
    A(f's_cmp_eq_u32 s{sB}, 3')
    A(f's_cselect_b32 s{sStep}, 1024, 0')
    A(f's_cselect_b32 s{sStep2}, 2048, 0')
    A(f's_cselect_b32 s{sStep3}, 3072, 0')
    A(f's_cselect_b32 s40, 64, 4096')
    A(f's_cselect_b32 s41, 7, 6')
    A(f's_mul_i32 s40, s40, s{sH}')
    A(f'v_lshrrev_b32 v{vT0}, 2, v{vLane}')
    A(f'v_lshlrev_b32 v{vT0}, s41, v{vT0}')
    A(f'v_and_b32 v{vT1}, 3, v{vLane}')
    A(f'v_lshl_add_u32 v{vT0}, v{vT1}, 4, v{vT0}')
    A(f'v_add_u32 v{vT0}, s40, v{vT0}')
    A(f's_lshl_b32 m0, s{sW}, 12')
    A(f'v_lshrrev_b32 v{vT1}, 4, v{vLane}')
    A(f'v_xor_b32 v{vT1}, v{vT1}, v{vLane}')
    A(f'v_and_b32 v{vT1}, 7, v{vT1}')
    A(f'v_lshlrev_b32 v{vT1}, 4, v{vT1}')
    A(f'v_lshrrev_b32 v{vD0}, 3, v{vLane}')
    A(f'v_lshl_add_u32 v{vD0}, v{vD0}, 7, v{vT1}')
    A(f'v_xor_b32 v{vD1}, 64, v{vD0}')
    A(f's_mul_i32 s{sEB}, s{sW}, {EBYTES}')
    A(f's_add_u32 s{sEB}, s{sEB}, {LDS_E}')
    A(f's_lshl_b32 s3, s2, 2')
    A(f's_add_u32 s19, s{sB}, s3')
    A(f's_mul_i32 s19, s19, 12800')
    A('s_waitcnt lgkmcnt(0)')
    stamp()
    A(f's_cmp_eq_u32 s{sB}, 1')
    A(f's_cselect_b64 s[{SRD_W}:{SRD_W+1}], s[8:9], s[6:7]')
    A(f's_cmp_eq_u32 s{sB}, 2')
    A(f's_cselect_b64 s[{SRD_W}:{SRD_W+1}], s[10:11], s[{SRD_W}:{SRD_W+1}]')
    A(f's_cmp_eq_u32 s{sB}, 3')
    A(f's_cselect_b64 s[{SRD_W}:{SRD_W+1}], s[12:13], s[{SRD_W}:{SRD_W+1}]')
    A(f's_mov_b32 s{SRD_W+2}, 8192')
    A(f's_mov_b32 s{SRD_W+3}, 0x20000')
    for k, so in enumerate(['0', f's{sStep}', f's{sStep2}', f's{sStep3}']):
        A(f'buffer_load_dwordx4 v{vT0}, s[{SRD_W}:{SRD_W+3}], {so} offen offset:{k*1024} lds')
    A(f's_add_u32 s{SRD_E}, s4, s19')
    A(f's_addc_u32 s{SRD_E+1}, s5, 0')
    A(f's_mov_b32 s{SRD_E+2}, 12800')
    A(f's_mov_b32 s{SRD_E+3}, 0x20000')
    A(f's_add_u32 s{SRD_O}, s14, s19')
    A(f's_addc_u32 s{SRD_O+1}, s15, 0')
    A(f's_mov_b32 s{SRD_O+2}, 12800')
    A(f's_mov_b32 s{SRD_O+3}, 0x20000')
    def edma():
        A(f's_add_u32 m0, s{sEB}, 12288')
        A(f'buffer_load_dwordx4 v{vD0}, s[{SRD_E}:{SRD_E+3}], s{s12288} offen{ldpol} lds')
        for t, so in enumerate(['0', f's{s4096}', f's{s8192}']):
            A(f's_add_u32 m0, s{sEB}, {4096*t}')
            for k in range(4):
                A(f'buffer_load_dwordx4 v{vD1 if k & 1 else vD0}, s[{SRD_E}:{SRD_E+3}], {so} offen offset:{1024*k}{ldpol} lds')
    delay = opts.get('delay', 1)
    if delay:
        A(f's_cmp_ge_u32 s{sW}, 4')
        A('s_cbranch_scc1 L_skip1')
    edma()
    if delay:
        A('L_skip1:')
    A(f'v_bfe_u32 v{vT0}, v{vI}, 1, 3')
    A(f'v_xor_b32 v{vT0}, v{vT0}, v{vHf}')
    A(f'v_lshlrev_b32 v{vT0}, 4, v{vT0}')
    A(f'v_lshl_add_u32 v{vT0}, v{vI}, 7, v{vT0}')
    A(f'v_add_u32 v{vEA[0]}, s{sEB}, v{vT0}')
    for s in range(1, 4): A(f'v_xor_b32 v{vEA[s]}, {32*s}, v{vEA[0]}')
    A(f'v_bfe_u32 v{vT0}, v{vI}, 3, 1')
    A(f'v_and_b32 v{vT1}, 1, v{vI}')
    A(f'v_lshl_add_u32 v{vT1}, v{vT0}, 1, v{vT1}')
    A(f'v_xor_b32 v{vT0}, v{vT0}, v{vHf}')
    A(f'v_lshlrev_b32 v{vT0}, 4, v{vT0}')
    A(f'v_lshl_add_u32 v{vETA[0]}, v{vT1}, 7, v{vT0}')
    A(f'v_add_u32 v{vETA[0]}, {96*128}, v{vETA[0]}')
    A(f'v_lshlrev_b32 v{vPR}, 8, v{vT1}')
    A(f'v_lshl_add_u32 v{vPR}, v{vHf}, 4, v{vPR}')
    A(f'v_add_u32 v{vPR}, {POFF}, v{vPR}')
    A(f'v_lshrrev_b32 v{vT1}, 2, v{vI}')
    A(f'v_xor_b32 v{vT1}, v{vT1}, v{vI}')
    A(f'v_and_b32 v{vT1}, 4, v{vT1}')
    A(f'v_and_or_b32 v{vT1}, v{vI}, 2, v{vT1}')
    A(f'v_cmp_eq_u32 vcc, 0, v{vT1}')
    A(f'v_mov_b32 v{vT1}, {ZOFF}')
    A(f'v_cndmask_b32 v{vETA[0]}, v{vT1}, v{vETA[0]}, vcc')
    A(f'v_cndmask_b32 v{vPR}, v{vT1}, v{vPR}, vcc')
    A(f'v_add_u32 v{vETA[0]}, s{sEB}, v{vETA[0]}')
    A(f'v_add_u32 v{vPR}, s{sEB}, v{vPR}')
    for s in range(1, 4): A(f'v_xor_b32 v{vETA[s]}, {32*s}, v{vETA[0]}')
    A(f'v_mov_b32 v{VT+1}, 0')
    A(f'v_mov_b32 v{PT+1}, 0')
    A(f'v_bfe_u32 v{vT0}, v{vLane}, 2, 2')
    A(f'v_lshl_add_u32 v{vT0}, v{vHf}, 3, v{vT0}')
    A(f'v_lshlrev_b32 v{vT0}, 6, v{vT0}')
    A(f's_lshl_b32 s43, s{sH}, 12')
    A(f'v_add_u32 v{vT0}, s43, v{vT0}')
    A(f'v_bfe_u32 v{vT1}, v{vLane}, 4, 1')
    A(f'v_lshl_add_u32 v{vT0}, v{vT1}, 5, v{vT0}')
    A(f'v_and_b32 v{vT1}, 3, v{vLane}')
    A(f'v_lshl_add_u32 v{vWa}, v{vT1}, 3, v{vT0}')
    A(f'v_and_b32 v{vT1}, 1, v{vLane}')
    A(f'v_lshl_add_u32 v{vWb}, v{vT1}, 4, v{vT0}')
    A(f'v_bfe_u32 v{vT1}, v{vLane}, 1, 1')
    A(f'v_lshl_add_u32 v{vWb}, v{vT1}, 3, v{vWb}')
    A(f'v_bfe_u32 v{vT0}, v{vI}, 1, 2')
    A(f'v_xor_b32 v{vT0}, v{vT0}, v{vHf}')
    A(f'v_lshlrev_b32 v{vT0}, 4, v{vT0}')
    A(f'v_lshl_add_u32 v{vOW}, v{vI}, 6, v{vT0}')
    A(f'v_add_u32 v{vOW}, s{sEB}, v{vOW}')
    A(f'v_lshrrev_b32 v{vT0}, 3, v{vLane}')
    A(f'v_xor_b32 v{vT0}, v{vT0}, v{vLane}')
    A(f'v_and_b32 v{vT0}, 3, v{vT0}')
    A(f'v_lshlrev_b32 v{vT0}, 4, v{vT0}')
    A(f'v_lshrrev_b32 v{vT1}, 2, v{vLane}')
    A(f'v_lshl_add_u32 v{vOR}, v{vT1}, 6, v{vT0}')
    A(f'v_add_u32 v{vOR}, s{sEB}, v{vOR}')
    A(f's_lshl_b32 s43, s{sH}, 6')
    A(f'v_and_b32 v{vT0}, 3, v{vLane}')
    A(f'v_lshlrev_b32 v{vT0}, 4, v{vT0}')
    A(f'v_lshl_add_u32 v{vOffO}, v{vT1}, 7, v{vT0}')
    A(f'v_add_u32 v{vOffO}, s43, v{vOffO}')
    A(f'v_and_b32 v{vT0}, 0x13, v{vI}')
    A(f'v_bfe_u32 v{vT1}, v{vI}, 2, 1')
    A(f'v_lshl_add_u32 v{vT0}, v{vT1}, 3, v{vT0}')
    A(f'v_bfe_u32 v{vT1}, v{vI}, 3, 1')
    A(f'v_lshl_add_u32 v{vT0}, v{vT1}, 2, v{vT0}')
    A(f'v_lshlrev_b32 v{vT0}, 1, v{vT0}')
    A(f'v_lshl_add_u32 v{vOffOT}, v{vHf}, 8, v{vT0}')
    A(f'v_add_u32 v{vOffOT}, s43, v{vOffOT}')
    A(f'v_add_u32 v{vOffOT}, {96*128}, v{vOffOT}')
    A(f's_add_u32 s43, s{sEB}, {POFF}')
    A(f'v_lshl_add_u32 v{vPW}, v{vHf}, 9, v{vT0}')
    A(f'v_add_u32 v{vPW}, s43, v{vPW}')
    A(f'v_bfe_u32 v{vT0}, v{vI}, 3, 1')
    A(f'v_and_b32 v{vT1}, 3, v{vI}')
    A(f'v_lshl_add_u32 v{vT0}, v{vT0}, 3, v{vT1}')
    A(f'v_lshlrev_b32 v{vT0}, 1, v{vT0}')
    A(f'v_add_u32 v{vT0}, 192, v{vT0}')
    A(f'v_and_b32 v{vT1}, 0x14, v{vI}')
    A(f'v_cmp_eq_u32 vcc, 0, v{vT1}')
    A(f'v_mov_b32 v{vT1}, 240')
    A(f'v_cndmask_b32 v{vT0}, v{vT1}, v{vT0}, vcc')
    A(f'v_lshl_add_u32 v{vPWT}, v{vHf}, 9, v{vT0}')
    A(f'v_add_u32 v{vPWT}, s43, v{vPWT}')
    A(f'v_mov_b32 v{vChk}, 0')
    stamp()
    if delay:
        A(f's_cmp_ge_u32 s{sW}, 4')
        A('s_cbranch_scc1 L_late')
        A('s_waitcnt vmcnt(13)')
        A('s_barrier')
        A('s_branch L_go')
        A('L_late:')
        A('s_waitcnt vmcnt(0)')
        A('s_barrier')
        A('L_redma:')
        A2 = Asm()
        edma()
        A('L_go:')
    else:
        A('s_waitcnt vmcnt(13)')
        A('s_barrier')
        A('s_branch L_go')
        A('L_redma:')
        edma()
        A('L_go:')
    A('s_waitcnt vmcnt(13)')
    stamp()
    pro = []
    for (Wb, mat, va) in ((WK, 1, vWa), (WV, 2, vWb), (WQ, 0, vWa), (WR, 3, vWb)):
        for s in range(4):
            for z in range(2):
                pro.append(f'ds_read_b64_tr_b16 {vr(Wb+4*s+2*z,2)}, v{va} offset:{LDS_W + mat*8192 + s*1024 + z*256}')

    M32 = 'v_mfma_f32_32x32x16_bf16'; M16 = 'v_mfma_f32_16x16x32_bf16'
    M32h = 'v_mfma_f32_32x32x8_bf16'; M16h = 'v_mfma_f32_16x16x16_bf16'
    def chain(op, D, nd, pairs, w=4):
        out = []
        for k, (a, b) in enumerate(pairs):
            cc = '0' if k == 0 else vr(D, nd)
            out.append(f'{op} {vr(D,nd)}, {vr(a,w)}, {vr(b,w)}, {cc}')
        return out
    def cvt(dst, src, n):
        return [f'v_cvt_pk_bf16_f32 v{dst+x}, v{src+2*x}, v{src+2*x+1}' for x in range(n)]
    def scale(src, n):
        return [f'v_mul_f32 v{src+x}, s{sC}, v{src+x}' for x in range(n)]
    def eread(t, after=None):
        aft = f' ;;after v{after}' if after is not None else ''
        if t == 3:
            return [f's_waitcnt vmcnt(12){aft}'] + [f'ds_read_b128 {vr(ET+4*s,4)}, v{vETA[s]}' for s in range(4)]
        return [f's_waitcnt vmcnt({8-4*t}){aft}'] + [f'ds_read_b128 {vr(E[t]+4*s,4)}, v{vEA[s]} offset:{4096*t}' for s in range(4)]

    P = list(pro)
    P += eread(3)
    tb = K[1]
    P += chain(M32, TA, 16, [(WK+4*s, ET+4*s) for s in range(4)]) + cvt(KT, TA, 8)
    P += chain(M16, RT, 4, [(ET+4*s, WV+4*s) for s in range(4)]) + [f'v_cvt_pk_bf16_f32 v{VT}, v{RT}, v{RT+1}']
    x = chain(M32, tb, 16, [(WQ+4*s, ET+4*s) for s in range(4)])
    P += x[:1] + eread(0, tb) + x[1:] + scale(tb, 16) + cvt(QT, tb, 8)
    P += chain(M16, RT, 4, [(ET+4*s, WR+4*s) for s in range(4)])
    temps = {0: (TA, K[1], K[2]), 1: (TA, K[2], TA), 2: (TA, WK, WV)}
    for t in range(3):
        ta, tb, tc = temps[t]
        P += chain(M32, ta, 16, [(WK+4*s, E[t]+4*s) for s in range(4)]) + cvt(K[t], ta, 8)
        P += chain(M32, tb, 16, [(E[t]+4*s, WV+4*s) for s in range(4)]) + cvt(V[t], tb, 8)
        P += chain(M32, tc, 16, [(WQ+4*s, E[t]+4*s) for s in range(4)]) + scale(tc, 16) + cvt(Q[t], tc, 8)
        x = chain(M32, RES[t], 16, [(WR+4*s, E[t]+4*s) for s in range(4)])
        if t < 2: P += x[:1] + eread(t+1, RES[t]) + x[1:]
        else: P += x
    P += [f'v_lshrrev_b32 v{vT0}, 2, v{vLane}', f'v_xor_b32 v{vT0}, v{vT0}, v{vLane}', f'v_and_b32 v{vT0}, 4, v{vT0}',
          f'v_cmp_eq_u32 vcc, 0, v{vT0}', f'v_mov_b32 v{vT1}, 0x3f803f80',
          f'v_cndmask_b32 v{ONES}, 0, v{vT1}, vcc'] + [f'v_mov_b32 v{ONES+k}, v{ONES}' for k in (1, 2, 3)]
    P += [f'v_xor_b32 v{vLane}, 32, v{vOW}']

    def body(safe):
        X = []
        def smm(t, g):
            if g < 3: return chain(M32, S[g], 16, [(K[g]+4*u, Q[t]+4*u) for u in range(2)])
            return chain(M16, SGT, 4, [(KT+4*u, Q[t]+4*u) for u in range(2)])
        for t in range(3):
            ctx = CTX[t & 1]; l = L[t & 1]
            for g in range(4): X += smm(t, g)
            if safe:
                m = vT0
                regs = [S[g]+r for g in range(3) for r in range(16)] + [SGT, SGT+1]
                X.append(f'v_max_f32 v{m}, v{regs[0]}, v{regs[1]}')
                for k in range(2, 50, 2): X.append(f'v_max3_f32 v{m}, v{regs[k]}, v{regs[k+1]}, v{m}')
                X.append(f'v_mov_b32 v{vT1}, v{m}')
                X.append(f'v_permlane32_swap_b32 v{m}, v{vT1}')
                X.append(f'v_max_f32 v{m}, v{m}, v{vT1}')
                for r in regs: X.append(f'v_sub_f32 v{r}, v{r}, v{m}')
            X += [f'v_exp_f32 v{SGT}, v{SGT}', f'v_exp_f32 v{SGT+1}, v{SGT+1}', f'v_cvt_pk_bf16_f32 v{PT}, v{SGT}, v{SGT+1}']
            X.append(f'{M32h} {vr(ctx,16)}, {vr(VT,2)}, {vr(PT,2)}, 0')
            X.append(f'{M16h} {vr(l,4)}, {vr(ONES,2)}, {vr(PT,2)}, 0')
            for g in range(3):
                for u in range(2):
                    b = S[g] + 8*u
                    X += [f'v_exp_f32 v{b+r}, v{b+r}' for r in range(8)]
                    X += cvt(b, b, 4)
                    X.append(f'{M32} {vr(ctx,16)}, {vr(V[g]+4*u,4)}, {vr(b,4)}, {vr(ctx,16)}')
                    X.append(f'{M16} {vr(l,4)}, {vr(ONES,4)}, {vr(b,4)}, {vr(l,4)}')
            X.append(f'v_rcp_f32 v{l+1}, v{l}')
            if not safe:
                X.append(f'v_subrev_u32 v{l+2}, s{sLO}, v{l}')
                X.append(f'v_max_u32 v{vChk}, v{vChk}, v{l+2}')
            X += [f'v_fma_f32 v{ctx+r}, v{ctx+r}, v{l+1}, v{RES[t]+r}' for r in range(16)]
            X += cvt(ctx, ctx, 8)
            X += [f'v_pk_max_i16 v{ctx+r}, v{ctx+r}, 0' for r in range(8)]
            X.append(f'ds_write_b128 v{vOW}, {vr(ctx,4)} offset:{OOFF+2048*t}')
            X.append(f'ds_write_b128 v{vLane}, {vr(ctx+4,4)} offset:{OOFF+2048*t}')
            for y in range(2):
                X.append(f'ds_read_b128 {vr(ctx+8+4*y,4)}, v{vOR} offset:{OOFF+2048*t+1024*y}')
            so = ['0', f's{s4096}', f's{s8192}'][t]
            for y in range(2):
                X.append(f'buffer_store_dwordx4 {vr(ctx+8+4*y,4)}, v{vOffO}, s[{SRD_O}:{SRD_O+3}], {so} offen offset:{2048*y}{stpol}')
        SF = RES[0]; PS = RES[1]; ONA = Q[0]; CT = Q[1]; LT = Q[1] + 4
        for g in range(4):
            kb = K[g] if g < 3 else KT
            X += chain(M16, SF+4*g, 4, [(QT+4*u, kb+4*u) for u in range(2)])
        if safe:
            X.append(f'v_and_b32 v{vT0}, 0x16, v{vI}')
            X.append(f'v_cmp_eq_u32 vcc, 0, v{vT0}')
            for r in range(2):
                m = vT0 if r == 0 else vT1
                X.append(f'v_cndmask_b32 v{m}, v{SF+r}, v{SF+12+r}, vcc')
                X.append(f'v_max3_f32 v{m}, v{m}, v{SF+r}, v{SF+4+r}')
                X.append(f'v_max_f32 v{m}, v{m}, v{SF+8+r}')
                for sh in (1, 2, 4, 8):
                    X.append(f'v_max_f32_dpp v{m}, v{m}, v{m} row_ror:{sh} row_mask:0xf bank_mask:0xf')
                X.append(f'v_mov_b32 v{SF+2}, v{m}')
                X.append(f'v_permlane16_swap_b32 v{m}, v{SF+2}')
                X.append(f'v_max_f32 v{m}, v{m}, v{SF+2}')
                for g in range(4):
                    X.append(f'v_sub_f32 v{SF+4*g+r}, v{SF+4*g+r}, v{m}')
                X.append(f'v_min_f32 v{SF+12+r}, 0, v{SF+12+r}')
        for g in range(4):
            b = SF + 4*g
            X += [f'v_exp_f32 v{b}, v{b}', f'v_exp_f32 v{b+1}, v{b+1}', f'v_cvt_pk_bf16_f32 v{b}, v{b}, v{b+1}']
            va, off = (vPW, 64*g) if g < 3 else (vPWT, 0)
            X.append(f'ds_write_b16 v{va}, v{b} offset:{off}')
            X.append(f'ds_write_b16_d16_hi v{va}, v{b} offset:{off+256}')
        X.append(f'ds_read_b64 {vr(PS+24,2)}, v{vPR} offset:192')
        for ks in range(6):
            X.append(f'ds_read_b128 {vr(PS+4*ks,4)}, v{vPR} offset:{32*ks}')
        X += [f'v_mov_b32 v{ONA+k}, 0x3f803f80' for k in range(5)] + [f'v_mov_b32 v{ONA+5}, 0']
        X.append(f'{M16h} {vr(CT,4)}, {vr(PS+24,2)}, {vr(VT,2)}, 0')
        X.append(f'{M16h} {vr(LT,4)}, {vr(PS+24,2)}, {vr(ONA+4,2)}, 0')
        for ks in range(6):
            X.append(f'{M16} {vr(CT,4)}, {vr(PS+4*ks,4)}, {vr(V[ks>>1]+4*(ks&1),4)}, {vr(CT,4)}')
            X.append(f'{M16} {vr(LT,4)}, {vr(PS+4*ks,4)}, {vr(ONA,4)}, {vr(LT,4)}')
        for r in range(2):
            X.append(f'v_rcp_f32 v{LT+2+r}, v{LT+r}')
            if not safe:
                X.append(f'v_subrev_u32 v{LT+r}, s{sLO}, v{LT+r}')
                X.append(f'v_max_u32 v{vChk}, v{vChk}, v{LT+r}')
            X.append(f'v_fma_f32 v{CT+r}, v{CT+r}, v{LT+2+r}, v{RT+r}')
        X.append(f'v_cvt_pk_bf16_f32 v{CT}, v{CT}, v{CT+1}')
        X.append(f'v_pk_max_i16 v{CT}, v{CT}, 0')
        X.append(f'buffer_store_short v{CT}, v{vOffOT}, s[{SRD_O}:{SRD_O+3}], 0 offen{stpol}')
        X.append(f'buffer_store_short_d16_hi v{CT}, v{vOffOT}, s[{SRD_O}:{SRD_O+3}], 0 offen offset:128{stpol}')
        return X

    A.extend(schedule(P, verbose=True, window=60))
    A('s_nop 15')
    stamp()
    A(f's_cmp_lg_u32 s{sSafe}, 0')
    A('s_cbranch_scc1 L_safe')
    fast = schedule(body(False), verbose=True, window=opts.get('window', 150))
    A.extend(fast)
    stamp()
    if opts.get('stamps'):
        A('s_waitcnt vmcnt(0)')
        stamp()
        A('s_load_dwordx2 s[48:49], s[0:1], 56')
        A('s_waitcnt lgkmcnt(0)')
        A('s_mov_b32 s50, 0x1000000')
        A('s_mov_b32 s51, 0x20000')
        A(f's_lshl_b32 s3, s2, 3')
        A(f's_add_u32 s3, s3, s{sW}')
        A(f's_lshl_b32 s3, s3, 7')
        A(f'v_mov_b32 v{vT0}, s3')
        for k in range(nst[0]):
            A(f'v_mov_b32 v{vT1}, s{64+4*k}')
            A(f'buffer_store_dword v{vT1}, v{vT0}, s[48:51], 0 offen offset:{4*k}')
            A(f'v_mov_b32 v{vT1}, s{66+4*k}')
            A(f'buffer_store_dword v{vT1}, v{vT0}, s[48:51], 0 offen offset:{64+4*k}')
    if opts.get('dbg'):
        A('s_waitcnt vmcnt(0)')
        A('s_memtime s[68:69]')
        A('s_memrealtime s[70:71]')
        A('s_load_dwordx2 s[48:49], s[0:1], 48')
        A('s_waitcnt lgkmcnt(0)')
        A('s_mov_b32 s50, 256')
        A('s_mov_b32 s51, 0x20000')
        A('s_and_b32 s72, s2, 63')
        A('s_cmp_lg_u32 s72, 63')
        A('s_cbranch_scc1 L_nodbg')
        A(f's_cmp_lg_u32 s{sW}, 7')
        A('s_cbranch_scc1 L_nodbg')
        A('s_lshr_b32 s72, s2, 6')
        A('s_lshl_b32 s72, s72, 4')
        A(f'v_mov_b32 v{vT0}, s72')
        A('s_sub_u32 s73, s68, s64')
        A('s_sub_u32 s74, s70, s66')
        A(f'v_mov_b32 v{RT}, s66')
        A(f'v_mov_b32 v{RT+1}, s70')
        A(f'v_mov_b32 v{RT+2}, s73')
        A(f'v_mov_b32 v{RT+3}, s74')
        A(f'buffer_store_dwordx4 v[{RT}:{RT+3}], v{vT0}, s[48:51], 0 offen')
        A('L_nodbg:')
    if opts.get('dbl'):
        A('s_waitcnt vmcnt(0)')
        A('s_memrealtime s[92:93]')
        A('s_waitcnt lgkmcnt(0)')
        A('s_sub_u32 s94, s92, s90')
        A(f's_mul_i32 s94, s94, {opts["dbl"]}')
        A('L_spin:')
        A('s_memrealtime s[96:97]')
        A('s_waitcnt lgkmcnt(0)')
        A('s_sub_u32 s95, s96, s92')
        A('s_cmp_lt_u32 s95, s94')
        A('s_cbranch_scc1 L_spin')
    if opts.get('spin'):
        A('s_waitcnt vmcnt(0)')
        A('s_memtime s[92:93]')
        A('s_waitcnt lgkmcnt(0)')
        A(f's_mov_b32 s94, {opts["spin"]}')
        A('L_spin:')
        A('s_memtime s[96:97]')
        A('s_waitcnt lgkmcnt(0)')
        A('s_sub_u32 s95, s96, s92')
        A('s_cmp_lt_u32 s95, s94')
        A('s_cbranch_scc1 L_spin')
    if opts.get('rspin'):
        A('s_waitcnt vmcnt(0)')
        A('s_memrealtime s[92:93]')
        A('s_waitcnt lgkmcnt(0)')
        A(f's_mov_b32 s94, {opts["rspin"]}')
        A('L_spin:')
        A('s_memrealtime s[96:97]')
        A('s_waitcnt lgkmcnt(0)')
        A('s_sub_u32 s95, s96, s92')
        A('s_cmp_lt_u32 s95, s94')
        A('s_cbranch_scc1 L_spin')
    A(f's_mov_b32 s44, 0x{80<<23:08x}')
    A(f'v_cmp_le_u32 vcc, s44, v{vChk}')
    if opts.get('force_safe'): A('s_mov_b64 vcc, -1')
    A('s_nop 4')
    A('s_cbranch_vccz L_end')
    A(f's_mov_b32 s{sSafe}, 1')
    A('s_waitcnt vmcnt(0) lgkmcnt(0)')
    A('s_nop 15')
    A(f'v_and_b32 v{vLane}, 63, v0')
    A(f'v_lshrrev_b32 v{vT1}, 4, v{vLane}')
    A(f'v_xor_b32 v{vT1}, v{vT1}, v{vLane}')
    A(f'v_and_b32 v{vT1}, 7, v{vT1}')
    A(f'v_lshlrev_b32 v{vT1}, 4, v{vT1}')
    A(f'v_lshrrev_b32 v{vD0}, 3, v{vLane}')
    A(f'v_lshl_add_u32 v{vD0}, v{vD0}, 7, v{vT1}')
    A(f'v_xor_b32 v{vD1}, 64, v{vD0}')
    A(f'v_bfe_u32 v{vT0}, v{vI}, 1, 3')
    A(f'v_xor_b32 v{vT0}, v{vT0}, v{vHf}')
    A(f'v_lshlrev_b32 v{vT0}, 4, v{vT0}')
    A(f'v_lshl_add_u32 v{vT0}, v{vI}, 7, v{vT0}')
    A(f'v_add_u32 v{vEA[0]}, s{sEB}, v{vT0}')
    for s in range(1, 4): A(f'v_xor_b32 v{vEA[s]}, {32*s}, v{vEA[0]}')
    A(f'v_bfe_u32 v{vT0}, v{vI}, 3, 1')
    A(f'v_and_b32 v{vT1}, 1, v{vI}')
    A(f'v_lshl_add_u32 v{vT1}, v{vT0}, 1, v{vT1}')
    A(f'v_xor_b32 v{vT0}, v{vT0}, v{vHf}')
    A(f'v_lshlrev_b32 v{vT0}, 4, v{vT0}')
    A(f'v_lshl_add_u32 v{vETA[0]}, v{vT1}, 7, v{vT0}')
    A(f'v_add_u32 v{vETA[0]}, {96*128}, v{vETA[0]}')
    A(f'v_lshrrev_b32 v{vT1}, 2, v{vI}')
    A(f'v_xor_b32 v{vT1}, v{vT1}, v{vI}')
    A(f'v_and_b32 v{vT1}, 4, v{vT1}')
    A(f'v_and_or_b32 v{vT1}, v{vI}, 2, v{vT1}')
    A(f'v_cmp_eq_u32 vcc, 0, v{vT1}')
    A(f'v_mov_b32 v{vT1}, {ZOFF}')
    A(f'v_cndmask_b32 v{vETA[0]}, v{vT1}, v{vETA[0]}, vcc')
    A(f'v_add_u32 v{vETA[0]}, s{sEB}, v{vETA[0]}')
    for s in range(1, 4): A(f'v_xor_b32 v{vETA[s]}, {32*s}, v{vETA[0]}')
    A('s_nop 4')
    A('s_branch L_redma')
    A('L_safe:')
    A('s_waitcnt vmcnt(0) lgkmcnt(0)')
    A('s_nop 15')
    A.extend(body(True))
    A('L_end:')
    A('s_endpgm')
    txt = A.text()
    print('nops inserted:', A.nops, file=sys.stderr)
    out = HEADER + f'; @launch grid=(256,1,1) block=(512,1,1) lds={lds_total}\n'
    out += '.amdgcn_target "amdgcn-amd-amdhsa--gfx950"\n.text\n'
    out += f'.globl {KNAME}\n.p2align 8\n.type {KNAME},@function\n'
    out += txt
    out += f""".section .rodata,"a"
.p2align 6
.amdhsa_kernel {KNAME}
  .amdhsa_next_free_vgpr 256
  .amdhsa_next_free_sgpr 100
  .amdhsa_accum_offset 256
  .amdhsa_group_segment_fixed_size 0
  .amdhsa_kernarg_size 64
  .amdhsa_user_sgpr_count 2
  .amdhsa_user_sgpr_kernarg_segment_ptr 1
  .amdhsa_system_sgpr_workgroup_id_x 1
.end_amdhsa_kernel
"""
    return out

if __name__ == '__main__':
    opts = {}
    outp = sys.argv[1]
    for a in sys.argv[2:]:
        k, v = a.split('=')
        opts[k] = int(v)
    open(outp, 'w').write(gen(opts))
```

```python
import re

TRANS = ('v_exp_f32', 'v_log_f32', 'v_rcp_f32', 'v_rsq_f32', 'v_sqrt_f32', 'v_sin_f32', 'v_cos_f32')

def parse_regs(tok, pfx):
    tok = tok.strip()
    tok = tok.lstrip('-')
    if tok.startswith('abs(') or tok.startswith('|'):
        tok = tok.replace('abs(', '').replace(')', '').replace('|', '')
    m = re.fullmatch(pfx + r'(\d+)', tok)
    if m: return [int(m.group(1))]
    m = re.fullmatch(pfx + r'\[(\d+):(\d+)\]', tok)
    if m: return list(range(int(m.group(1)), int(m.group(2)) + 1))
    return []

class Ins:
    def __init__(self, text):
        self.text = text.strip()
        t = self.text.split(';')[0].strip()
        self.is_label = t.endswith(':')
        parts = t.split(None, 1)
        self.op = parts[0] if parts else ''
        rest = parts[1] if len(parts) > 1 else ''
        ops = [o.strip() for o in rest.split(',')] if rest else []
        self.mods = ''
        if ops:
            sp = ops[-1].split(None, 1)
            if len(sp) > 1:
                ops[-1] = sp[0]; self.mods = sp[1]
        self.ops = ops
        op = self.op
        self.vr, self.vw, self.sr, self.sw = set(), set(), set(), set()
        self.srcC = set(); self.srcAB = set()
        self.kind = 'other'
        V = lambda o: parse_regs(o, 'v')
        S = lambda o: parse_regs(o, 's') + ([106, 107] if o == 'vcc' else []) + ([124] if o == 'm0' else []) + ([126,127] if o == 'exec' else [])
        if self.is_label:
            self.kind = 'label'
        elif op.startswith('v_mfma'):
            self.kind = 'mfma'
            self.passes = 8 if '32x32x16' in op or '32x32x8' in op else 4
            self.vw = set(V(ops[0])); self.srcAB = set(V(ops[1]) + V(ops[2])); self.srcC = set(V(ops[3]))
            self.vr = self.srcAB | self.srcC
            self.dlist = V(ops[0]); self.clist = V(ops[3])
        elif op.startswith('v_cmp'):
            self.kind = 'valu'
            self.sw = set(S(ops[0]))
            for o in ops[1:]: self.vr |= set(V(o)); self.sr |= set(S(o))
        elif op.startswith('v_readfirstlane') or op.startswith('v_readlane'):
            self.kind = 'valu'; self.readlane = True
            self.sw = set(S(ops[0])); self.vr = set(V(ops[1]))
        elif op.startswith('v_permlane'):
            self.kind = 'valu'; self.permlane = True
            self.vw = set(V(ops[0]) + V(ops[1])); self.vr = set(self.vw)
        elif op.startswith('v_'):
            self.kind = 'trans' if op.replace('_e32','').replace('_e64','') in TRANS else 'valu'
            self.vw = set(V(ops[0]))
            for o in ops[1:]: self.vr |= set(V(o)); self.sr |= set(S(o))
            if op.startswith('v_fmac') or op.startswith('v_pk_fmac') or 'dst_unused:UNUSED_PRESERVE' in self.mods: self.vr |= self.vw
            if op.startswith('v_cndmask') and len(ops) == 3: self.sr |= {106,107}
            if '_dpp' in op or 'row_' in self.mods or 'quad_perm' in self.mods:
                self.dpp = True; self.vr |= self.vw
        elif op.startswith('buffer_load') or op.startswith('global_load'):
            self.kind = 'vmload'
            if 'lds' in self.mods.split() or op.startswith('global_load_lds'):
                for o in ops: self.vr |= set(V(o)); self.sr |= set(S(o))
                self.sr |= {124}; self.ldsdma = True
            else:
                self.vw = set(V(ops[0]))
                if 'd16' in op: self.vr |= self.vw
                for o in ops[1:]: self.vr |= set(V(o)); self.sr |= set(S(o))
        elif op.startswith('buffer_store') or op.startswith('global_store') or op.startswith('buffer_atomic'):
            self.kind = 'vmstore'
            for o in ops: self.vr |= set(V(o)); self.sr |= set(S(o))
            self.wide = ('x4' in op or 'x3' in op)
            self.data = set(V(ops[0])) if op.startswith('buffer') else set(V(ops[1]))
        elif op.startswith('ds_read') or op.startswith('ds_bpermute') or op.startswith('ds_swizzle') or op.startswith('ds_permute'):
            self.kind = 'dsread'
            self.vw = set(V(ops[0]))
            if 'd16' in op: self.vr |= self.vw
            for o in ops[1:]: self.vr |= set(V(o))
        elif op.startswith('ds_write'):
            self.kind = 'dswrite'
            for o in ops: self.vr |= set(V(o))
        elif op.startswith('s_load') or op.startswith('s_memtime') or op.startswith('s_memrealtime'):
            self.kind = 'smem'
            self.sw = set(S(ops[0]))
            for o in ops[1:]: self.sr |= set(S(o))
        elif op.startswith('s_nop'):
            self.kind = 'nop'; self.n = int(ops[0], 0) + 1
        elif op.startswith('s_waitcnt') or op in ('s_barrier', 's_endpgm', 's_setprio', 's_sleep'):
            self.kind = 'sync'
            m = re.search(r';;after (.*)$', self.text)
            self.after = set()
            if m:
                for o in m.group(1).split(): self.after |= set(V(o))
        elif op.startswith('s_cbranch') or op.startswith('s_branch') or op.startswith('s_setpc') or op.startswith('s_swappc'):
            self.kind = 'branch'
        elif op.startswith('s_'):
            self.kind = 'salu'
            if op.startswith('s_cmp') or op.startswith('s_bitcmp'):
                for o in ops: self.sr |= set(S(o))
            else:
                self.sw = set(S(ops[0]))
                for o in ops[1:]: self.sr |= set(S(o))
                if 'saveexec' in op: self.sw |= {126,127}
    def isvalu(self): return self.kind in ('valu', 'trans')
    def states(self):
        if self.kind == 'nop': return self.n
        if self.kind == 'label' or not self.op or self.op.startswith('.') or self.op.startswith(';'): return 0
        return 1

def required_gap(p, c):
    g = 0
    if p.isvalu():
        if c.kind == 'mfma' and (p.vw & c.vr): g = max(g, 2)
        if p.kind == 'trans' and c.kind == 'valu' and (p.vw & (c.vr | c.vw)): g = max(g, 1)
        if p.kind == 'trans' and c.kind in ('vmstore', 'dswrite', 'vmload', 'dsread') and (p.vw & c.vr): g = max(g, 1)
        if getattr(c, 'permlane', False) and (p.vw & c.vr): g = max(g, 2)
        if getattr(c, 'dpp', False) and (p.vw & c.vr): g = max(g, 2)
        if getattr(c, 'readlane', False) and (p.vw & c.vr): g = max(g, 1)
        if p.sw:
            if c.isvalu() and (p.sw & c.sr): g = max(g, 4 if getattr(c,'readlane',False) else 2)
            if c.kind in ('vmload', 'vmstore') and (p.sw & c.sr): g = max(g, 5)
            if c.kind in ('salu','branch','smem') and (p.sw & c.sr or c.kind=='branch'): g = max(g, 1)
            if ({126,127} & p.sw):
                if c.kind == 'mfma': g = max(g, 4)
                if getattr(c, 'dpp', False): g = max(g, 5)
                if getattr(c, 'permlane', False) or getattr(c, 'readlane', False): g = max(g, 4)
        if 'op_sel' in p.mods or 'sel:' in p.mods:
            if c.isvalu() and (p.vw & (c.vr | c.vw)): g = max(g, 1)
    if p.kind == 'mfma':
        P = p.passes
        full = {2: 5, 4: 8, 8: 12, 16: 20}[P]
        if c.kind == 'mfma':
            if p.vw & c.srcAB: g = max(g, full)
            if p.vw & c.srcC:
                if c.clist == p.dlist and c.op == p.op: g = max(g, 2 if P == 2 else 0)
                else: g = max(g, {2: 4, 4: 6, 8: 10, 16: 18}[P])
            elif p.vw & c.vw:
                if not (c.passes >= P): g = max(g, full)
        elif c.isvalu() or c.kind in ('vmload', 'vmstore', 'dsread', 'dswrite'):
            if p.vw & (c.vr | c.vw): g = max(g, full)
            if c.isvalu() and (p.srcC & c.vw): g = max(g, {2: 1, 4: 3, 8: 7, 16: 15}[P])
            if c.kind in ('vmload','dsread') and (p.srcC & c.vw): g = max(g, {2: 1, 4: 3, 8: 7, 16: 15}[P])
    if p.kind == 'vmstore' and p.wide:
        if (p.data & c.vw): g = max(g, 2 if c.isvalu() or c.kind=='mfma' else 1)
    if p.kind == 'salu' and 124 in p.sw and getattr(c, 'ldsdma', False): g = max(g, 1)
    if p.kind == 'salu' and ({126,127} & p.sw):
        pass
    return g

class Asm:
    def __init__(self):
        self.items = []
    def __call__(self, text):
        for line in text.split('\n'):
            if line.strip(): self.items.append(Ins(line))
    def extend(self, lst):
        for t in lst: self(t)
    def finalize(self, auto_wait=True):
        out = []
        vm = []
        lg = []
        nops = 0
        for ins in self.items:
            if auto_wait:
                touch = ins.vr | ins.vw
                need_vm = None; need_lg = None
                for k, regs in enumerate(vm):
                    if regs & touch: need_vm = len(vm) - 1 - k
                for k, (regs, sregs) in enumerate(lg):
                    if (regs & touch): need_lg = len(lg) - 1 - k
                    if sregs and (sregs & (ins.sr | ins.sw)): need_lg = 0
                if need_lg is not None and any(s for _, s in lg): need_lg = 0
                if need_vm is not None or need_lg is not None:
                    w = 's_waitcnt'
                    if need_vm is not None:
                        w += f' vmcnt({min(need_vm,63)})'; vm = vm[len(vm) - need_vm:] if need_vm else []
                    if need_lg is not None:
                        w += f' lgkmcnt({min(need_lg,15)})'; lg = lg[len(lg) - need_lg:] if need_lg else []
                    out.append(Ins(w))
                if ins.op == 's_waitcnt':
                    m = re.search(r'vmcnt\((\d+)\)', ins.text)
                    if m:
                        n = int(m.group(1)); vm = vm[len(vm) - n:] if n and n < len(vm) else ([] if n == 0 else vm)
                    m = re.search(r'lgkmcnt\((\d+)\)', ins.text)
                    if m:
                        n = int(m.group(1)); lg = lg[len(lg) - n:] if n and n < len(lg) else ([] if n == 0 else lg)
            need = 0; dist = 0
            for p in reversed(out[-40:]):
                g = required_gap(p, ins)
                if g > dist: need = max(need, g - dist)
                dist += p.states()
                if dist >= 24: break
            while need > 0:
                k = min(need, 16); out.append(Ins(f's_nop {k-1}')); need -= k; nops += k
            out.append(ins)
            if ins.kind in ('vmload', 'vmstore'): vm.append(set(ins.vw))
            if ins.kind in ('dsread', 'dswrite'): lg.append((set(ins.vw), set()))
            if ins.kind == 'smem': lg.append((set(), set(ins.sw) or {999}))
            if lg and len(lg) > 15: pass
        self.nops = nops
        return out
    def text(self, **kw):
        o = self.finalize(**kw)
        return '\n'.join(('' if i.is_label else '    ') + i.text for i in o) + '\n'

def interleave(main, fill, ratio=None):
    out = []
    n, m = len(main), len(fill)
    if m == 0: return list(main)
    if n == 0: return list(fill)
    j = 0
    for i, x in enumerate(main):
        while j < m and j * n <= i * m:
            out.append(fill[j]); j += 1
        out.append(x)
    out += fill[j:]
    return out


LAT_SCALE = 1.0
DS_COST = 4
def issue_cost(ins):
    if ins.kind in ('dsread', 'dswrite', 'sync', 'salu', 'smem'): return DS_COST
    if ins.kind in ('vmload', 'vmstore'): return 2 * DS_COST
    if ins.kind == 'mfma': return 8
    if ins.kind == 'trans' or getattr(ins, 'permlane', False): return 8
    if ins.kind == 'valu': return 4
    if ins.kind in ('vmload', 'vmstore'): return 8
    if ins.kind in ('dsread', 'dswrite'): return 4
    if ins.kind == 'nop': return 4 * ins.n
    return 4

def latency(p, c):
    if c.kind == 'sync': return issue_cost(p)
    if p.kind == 'mfma':
        if c.kind == 'mfma' and (p.vw & c.srcC) and c.clist == p.dlist and c.op == p.op and not (p.vw & c.srcAB):
            return p.passes * 4
        if p.vw & (c.vr | c.vw): return int((p.passes * 4 + 20) * LAT_SCALE)
        return 8
    if p.kind == 'dsread' and (p.vw & (c.vr | c.vw)): return int(128 * LAT_SCALE)
    if p.kind == 'dswrite' and c.kind == 'dsread': return int(40 * LAT_SCALE)
    if p.kind == 'vmload' and (p.vw & (c.vr | c.vw)): return 600
    if p.kind == 'trans' and (p.vw & c.vr): return 12
    return issue_cost(p)

def schedule(texts, prio=None, window=400, verbose=False, mfma_first=True, tail_ctx=None):
    ops = [Ins(t) if isinstance(t, str) else t for t in texts]
    n = len(ops)
    preds = [[] for _ in range(n)]
    lastw = {}; readers = {}
    last_ds = None; last_vm = None
    def regs(i, w):
        o = ops[i]
        if w: return [('v', r) for r in o.vw] + [('s', r) for r in o.sw]
        return [('v', r) for r in o.vr] + [('s', r) for r in o.sr]
    for i, o in enumerate(ops):
        ps = set()
        for r in regs(i, False):
            if r in lastw: ps.add(lastw[r])
        for r in regs(i, True):
            if r in lastw: ps.add(lastw[r])
            for j in readers.get(r, []): ps.add(j)
        if o.kind in ('dsread', 'dswrite', 'sync'):
            if last_ds is not None: ps.add(last_ds)
            last_ds = i
        if o.kind in ('vmload', 'vmstore', 'sync'):
            if last_vm is not None: ps.add(last_vm)
            last_vm = i
        if o.kind == 'sync':
            for r in o.after:
                if ('v', r) in lastw: ps.add(lastw[('v', r)])
        assert o.kind not in ('branch', 'label'), o.text
        ps.discard(i)
        preds[i] = sorted(ps)
        for r in regs(i, True):
            lastw[r] = i; readers[r] = []
        for r in regs(i, False):
            readers.setdefault(r, []).append(i)
    succs = [[] for _ in range(n)]
    for i in range(n):
        for p in preds[i]: succs[p].append(i)
    npred = [len(p) for p in preds]
    done_t = [None] * n; done_idx = [None] * n
    ready = [i for i in range(n) if npred[i] == 0]
    t = 0; pipe_free = 0; idx = 0
    order = []; stall = 0
    if prio is None: prio = list(range(n))
    while len(order) < n:
        lo = min(ready, key=lambda i: prio[i])
        cands = []
        for i in ready:
            if prio[i] > prio[lo] + window: continue
            rt = 0; ok_idx = True; short = 0
            for p in preds[i]:
                rt = max(rt, done_t[p] + latency(ops[p], ops[i]))
                g = required_gap(ops[p], ops[i])
                short = max(short, g - (idx - done_idx[p] - 1))
            if ops[i].kind == 'mfma': rt = max(rt, pipe_free)
            rt = max(rt, t + 4 * max(short, 0))
            cands.append((rt, i))
        now = [(i) for rt, i in cands if rt <= t]
        if now:
            mf = [i for i in now if ops[i].kind == 'mfma']
            if mf and mfma_first: pick = min(mf, key=lambda i: prio[i])
            else: pick = min(now, key=lambda i: prio[i])
        else:
            rt, pick = min(cands, key=lambda x: (x[0], prio[x[1]]))
            stall += rt - t
            idx += (rt - t + 3) // 4 if False else 0
            t = rt
        o = ops[pick]
        done_t[pick] = t; done_idx[pick] = idx
        if o.kind == 'mfma': pipe_free = t + o.passes * 4
        t += issue_cost(o); idx += 1
        order.append(pick); ready.remove(pick)
        for s in succs[pick]:
            npred[s] -= 1
            if npred[s] == 0: ready.append(s)
    if verbose: print(f'schedule: {n} ops, est {t} cycles, stall {stall}')
    return [ops[i].text for i in order]
```

```python
import re
TOK = re.compile(r'@([A-Za-z0-9_]+)\+(\d+):(\d+)@')
class VRegs:
    def __init__(self):
        self.size = {}; self.n = 0; self.pinned = {}
    def pin(self, name, base, size):
        r = self.new(name, size); self.pinned[r.nm] = base; return r
    def new(self, name, size):
        self.n += 1
        nm = f'{name}_{self.n}'
        self.size[nm] = size
        return VR(nm, size)
class VR:
    def __init__(self, nm, size): self.nm = nm; self.size = size
    def __call__(self, off=0, n=1):
        assert off + n <= self.size, (self.nm, off, n)
        return f'@{self.nm}+{off}:{n}@'
class PR:
    def __init__(self, base, size): self.base = base; self.size = size
    def __call__(self, off=0, n=1):
        assert off + n <= self.size
        b = self.base + off
        return f'v[{b}:{b+n-1}]' if n > 1 else f'v{b}'
def allocate(prog, vr, free_regs, verbose=False):
    first = {}; last = {}
    for i, t in enumerate(prog):
        for m in TOK.finditer(t):
            first.setdefault(m.group(1), i); last[m.group(1)] = i
    freed_at = {r: -1000 for r in free_regs}
    base = {}
    ends = {}
    for nm, e in last.items(): ends.setdefault(e, []).append(nm)
    starts = {}
    for nm, s in first.items(): starts.setdefault(s, []).append(nm)
    peak = 0; total = len(free_regs)
    for nm, b in vr.pinned.items():
        if nm not in first: continue
        base[nm] = b
        for k in range(vr.size[nm]): del freed_at[b + k]
    for i in range(len(prog)):
        for nm in starts.get(i, []):
            if nm in vr.pinned: continue
            n = vr.size[nm]
            al0 = 4 if n >= 4 else (2 if n >= 2 else 1)
            if n >= 8: al0 = 8
            if n >= 16: al0 = 16
            best = None
            al = al0
            while best is None and al >= (2 if n >= 2 else 1):
                for b in range(0, 256, al):
                    if all((b + k) in freed_at for k in range(n)):
                        key = max(freed_at[b + k] for k in range(n))
                        b16 = b & ~15; b8 = b & ~7
                        whole = all((b16 + k) in freed_at for k in range(16))
                        whole8 = all((b8 + k) in freed_at for k in range(8))
                        pen = (2 if whole else 0) + (1 if (n < 8 and whole8) else 0)
                        k2 = (pen if n <= 8 else 0, key, b)
                        if best is None or k2 < best[0]: best = (k2, b)
                al //= 2
                if al == 0: break
            if best is None:
                raise RuntimeError(f'out of registers for {nm} size {n} at {i}: {prog[i]}; free={sorted(freed_at)}')
            b = best[1]; base[nm] = b
            for k in range(n): del freed_at[b + k]
        peak = max(peak, total - len(freed_at))
        for nm in ends.get(i, []):
            for k in range(vr.size[nm]): freed_at[base[nm] + k] = i
    if verbose: print('valloc peak', peak, 'of', total)
    def sub(m):
        b = base[m.group(1)] + int(m.group(2)); n = int(m.group(3))
        return f'v[{b}:{b+n-1}]' if n > 1 else f'v{b}'
    return [TOK.sub(sub, t) for t in prog], base
```

```python
import sys, math, struct
from asmlib import *
import asmlib
from valloc import *
from gen1 import HEADER, KNAME, f32bits

M32 = 'v_mfma_f32_32x32x16_bf16'; M16 = 'v_mfma_f32_16x16x32_bf16'
M32h = 'v_mfma_f32_32x32x8_bf16'; M16h = 'v_mfma_f32_16x16x16_bf16'

def gen(opts):
    A = Asm()
    vEA = [1, 2, 3, 4]
    vKT, vQT, vVR, vWr = 5, 6, 7, 8
    vOW, vOW2, vOR, vOffO, vOffOT, vPW, vPWT, vPR, vChk = 9, 10, 11, 12, 13, 14, 15, 16, 17
    PT = PR(18, 2); ONES = PR(20, 4); VT = PR(24, 2)
    FREE = list(range(26, 256))
    vLane, vI, vHf, vT0, vT1, vD0, vD1, vL16, vRs, vPf, vTl, vWx, vWn, vT2, vD2 = range(240, 255)
    vQ = 232
    vXY = 222
    vWF = 200
    pE, pQ, pK, pV, pR, pO = 4, 6, 8, 10, 12, 14
    SRD_O, SRD_C = 24, 28
    sW, sB, sH, sEB, sSC, sW1k, sEoff, s4096, s8192, sLO, sMe, sM1, sM2, sM3, sC, sT, sT2, sBlk, sTE = range(32, 51)
    LDS_W = 0; LDS_E = 32768; EBYTES = 12288
    LDS_T = LDS_E + 4 * EBYTES
    LDS_TE = LDS_T + 8192
    LDS_Z = LDS_TE + 2560
    LDS_S = LDS_Z + 512; SBYTES = 3072
    lds_total = LDS_S + 8 * SBYTES
    POFF = 2048
    stpol = {0: '', 1: ' nt', 2: ' sc1', 3: ' sc0 sc1', 4: ' sc0 sc1 nt'}[opts.get('stpol', 3)]
    ldpol = {0: '', 1: ' nt'}[opts.get('ldpol', 1)]
    c_scale = math.log2(math.e) / math.sqrt(32.0)
    nst = [0]
    def stamp_txt():
        if not opts.get('stamps'): return []
        k = nst[0]; nst[0] += 1
        return [f's_memtime s[{56+4*k}:{57+4*k}]', f's_memrealtime s[{58+4*k}:{59+4*k}]']
    def stamp(): A.extend(stamp_txt())
    srd = lambda b: f's[{b}:{b+3}]'
    sp = lambda b: f's[{b}:{b+1}]'

    A(f'{KNAME}:')
    stamp()
    A('s_load_dwordx8 s[4:11], s[0:1], 0')
    A('s_load_dwordx4 s[12:15], s[0:1], 32')
    A('s_cmp_ge_u32 s2, 256')
    A('s_cbranch_scc1 L_end')
    A(f'v_lshlrev_b32 v{vL16}, 4, v0')
    A(f'v_bfe_u32 v{vT1}, v0, 4, 2')
    A(f'v_readfirstlane_b32 s{sW1k}, v{vL16}')
    A(f'v_xor_b32 v{vT1}, v{vT1}, v0')
    A(f'v_and_b32 v{vT1}, 7, v{vT1}')
    A(f'v_lshlrev_b32 v{vT1}, 4, v{vT1}')
    A(f'v_and_b32 v{vD0}, 0x38, v0')
    A(f'v_lshl_add_u32 v{vD0}, v{vD0}, 4, v{vT1}')
    A(f's_mul_i32 s3, s2, {4*12800}')
    A(f's_lshr_b32 s{sB}, s{sW1k}, 11')
    A(f's_mul_i32 s{sEoff}, s{sB}, 12800')
    A(f's_add_u32 s{sEoff}, s{sEoff}, s3')
    A(f's_and_b32 s{sT}, s{sW1k}, 1024')
    A(f's_lshl_b32 s{sT}, s{sT}, 1')
    A(f's_add_u32 s{sT2}, s{sT}, s{sEoff}')
    A(f'v_add_u32 v{vD0}, s{sT2}, v{vD0}')
    A(f'v_xor_b32 v{vD1}, 64, v{vD0}')
    A(f's_mul_i32 s{sEB}, s{sB}, {EBYTES}')
    A(f's_add_u32 s{sEB}, s{sEB}, {LDS_E}')
    A(f's_add_u32 s{sMe}, s{sEB}, s{sT}')
    A(f'v_and_b32 v{vT0}, 0xfc, v0')
    A(f'v_and_b32 v{vT1}, 48, v{vL16}')
    A(f'v_lshl_add_u32 v{vRs}, v{vT0}, 5, v{vT1}')
    A(f'v_lshrrev_b32 v{vT0}, 8, v0')
    A(f'v_lshl_add_u32 v{vRs}, v{vT0}, 6, v{vRs}')
    A(f'v_bfe_u32 v{vT0}, v0, 3, 1')
    A(f'v_xor_b32 v{vT1}, v{vT0}, v0')
    A(f'v_and_b32 v{vT1}, 15, v{vT1}')
    A(f's_lshr_b32 s{sT}, s{sT}, 3')
    A(f's_add_u32 s{sT}, s{sT}, s{sEoff}')
    A(f's_add_u32 s{sT}, s{sT}, {96*128}')
    A(f'v_lshl_add_u32 v{vTl}, v{vT1}, 4, s{sT}')
    A(f's_mul_i32 s{sM1}, s{sW1k}, 9')
    A(f's_lshr_b32 s{sM1}, s{sM1}, 5')
    A(f's_add_u32 s{sM1}, s{sM1}, {LDS_TE}')
    A(f's_add_u32 m0, s{sW1k}, {LDS_W + 8192}')
    A(f's_add_u32 s{sM2}, s{sW1k}, {LDS_W + 2*8192}')
    A(f's_add_u32 s{sM3}, s{sW1k}, {LDS_W + 3*8192}')
    A('s_waitcnt lgkmcnt(0)')
    stamp()
    A(f'global_load_lds_dwordx4 v{vL16}, {sp(pK)}')
    A(f's_mov_b32 m0, s{sM2}')
    A(f'global_load_dwordx4 v[{vQ}:{vQ+3}], v{vL16}, {sp(pQ)}')
    A(f'global_load_lds_dwordx4 v{vL16}, {sp(pV)}')
    A(f's_mov_b32 m0, s{sM3}')
    A(f's_nop 0')
    A(f'global_load_lds_dwordx4 v{vRs}, {sp(pR)}')
    A(f's_mov_b32 m0, s{sMe}')
    if opts.get('ibar', 1): A('s_barrier')
    def edma(t):
        out = []
        if t:
            out += [f's_add_u32 m0, s{sMe}, {4096*t}', f'v_add_u32 v{vD0}, 4096, v{vD0}', f'v_add_u32 v{vD1}, 4096, v{vD1}']
        out += [f'global_load_lds_dwordx4 v{vD0}, {sp(pE)}{ldpol}',
                f'global_load_lds_dwordx4 v{vD1}, {sp(pE)} offset:1024{ldpol}']
        return out
    A.extend(edma(0))
    A(f's_mov_b32 m0, s{sM1}')
    A(f's_mov_b64 exec, 0xffff')
    A(f'global_load_lds_dwordx4 v{vTl}, {sp(pE)}')
    A(f's_mov_b64 exec, -1')
    npf = 0
    if opts.get('prefetch', 1):
        A(f's_getpc_b64 s[{SRD_C}:{SRD_C+1}]')
        A('L_pc:')
        A(f's_mov_b32 s{SRD_C+2}, L_safe-L_pc')
        A(f's_mov_b32 s{SRD_C+3}, 0x20000')
        A(f'v_lshlrev_b32 v{vT0}, 6, v0')
        A(f'buffer_load_dword v{vPf}, v{vT0}, {srd(SRD_C)}, 0 offen')
        npf = 1
    stamp()
    A(f's_lshr_b32 s{sW}, s{sW1k}, 10')
    A(f's_and_b32 s{sH}, s{sW}, 1')
    A(f's_add_u32 s{SRD_O}, s{pO}, s{sEoff}')
    A(f's_addc_u32 s{SRD_O+1}, s{pO+1}, 0')
    A(f's_mov_b32 s{SRD_O+2}, 12800')
    A(f's_mov_b32 s{SRD_O+3}, 0x20000')
    A(f's_mov_b32 s{s4096}, 4096')
    A(f's_mov_b32 s{s8192}, 8192')
    A(f's_mov_b32 s{sC}, 0x{f32bits(c_scale):08x}')
    A(f's_mov_b32 s{sLO}, 0x{(127-40)<<23:08x}')
    A(f's_mul_i32 s{sSC}, s{sW}, {SBYTES}')
    A(f's_add_u32 s{sSC}, s{sSC}, {LDS_S}')
    A(f's_mov_b32 s{sTE}, {LDS_TE}')
    A(f's_lshl_b32 s{sBlk}, s{sW1k}, 2')
    A(f'v_and_b32 v{vLane}, 63, v0')
    A(f'v_and_b32 v{vI}, 31, v0')
    A(f'v_bfe_u32 v{vHf}, v0, 5, 1')
    A(f'v_mov_b32 {VT(0)}, 0')
    A(f'v_mov_b32 {VT(1)}, 0')
    A(f'v_mov_b32 {PT(1)}, 0')
    A(f'v_lshlrev_b32 v{vT0}, 3, v{vLane}')
    A(f'ds_write_b64 v{vT0}, {VT(0,2)} offset:{LDS_Z}' if LDS_Z < 65536 else f'v_add_u32 v{vT0}, {LDS_Z}, v{vT0}')
    if LDS_Z >= 65536: A(f'ds_write_b64 v{vT0}, {VT(0,2)}')
    A(f'v_bfe_u32 v{vT0}, v{vLane}, 2, 2')
    A(f'v_lshl_add_u32 v{vT2}, v{vHf}, 3, v{vT0}')
    A(f'v_lshlrev_b32 v{vT2}, 6, v{vT2}')
    A(f'v_bfe_u32 v{vT1}, v{vLane}, 4, 1')
    A(f'v_lshl_add_u32 v{vT2}, v{vT1}, 5, v{vT2}')
    A(f'v_add_u32 v{vT2}, s{sBlk}, v{vT2}')
    A(f'v_and_b32 v{vT1}, 3, v{vLane}')
    A(f'v_lshl_add_u32 v{vWx}, v{vT1}, 3, v{vT2}')
    A(f'v_and_b32 v{vT1}, 1, v{vLane}')
    A(f'v_lshl_add_u32 v{vT2}, v{vT1}, 4, v{vT2}')
    A(f'v_bfe_u32 v{vT1}, v{vLane}, 1, 1')
    A(f'v_lshl_add_u32 v{vT2}, v{vT1}, 3, v{vT2}')
    A(f's_cmp_ge_u32 s{sW}, 4')
    A(f's_cselect_b64 vcc, -1, 0')
    A(f'v_cndmask_b32 v{vWx}, v{vWx}, v{vT2}, vcc')
    A(f's_lshl_b32 s{sT}, s{sH}, 12')
    A(f'v_lshlrev_b32 v{vWr}, 4, v{vLane}')
    A(f'v_add_u32 v{vRs}, s{sBlk}, v{vWr}')
    A(f'v_add_u32 v{vWr}, s{sT}, v{vWr}')
    A(f'v_bfe_u32 v{vT0}, v{vI}, 1, 3')
    A(f'v_xor_b32 v{vT0}, v{vT0}, v{vHf}')
    A(f'v_lshlrev_b32 v{vT0}, 4, v{vT0}')
    A(f'v_lshl_add_u32 v{vT0}, v{vI}, 7, v{vT0}')
    A(f'v_add_u32 v{vEA[0]}, s{sEB}, v{vT0}')
    for s in range(1, 4): A(f'v_xor_b32 v{vEA[s]}, {32*s}, v{vEA[0]}')
    A(f'v_bfe_u32 v{vT0}, v{vI}, 3, 1')
    A(f'v_and_b32 v{vT1}, 1, v{vI}')
    A(f'v_lshl_add_u32 v{vT1}, v{vT0}, 1, v{vT1}')
    A(f'v_lshlrev_b32 v{vT0}, 4, v{vHf}')
    A(f'v_lshl_add_u32 v{vQT}, v{vT1}, 6, v{vT0}')
    A(f's_lshl_b32 s{sT}, s{sH}, 10')
    A(f's_lshl_b32 s{sT2}, s{sB}, 8')
    A(f's_add_u32 s{sT}, s{sT}, s{sT2}')
    A(f's_add_u32 s{sT}, s{sT}, {LDS_T}')
    A(f'v_add_u32 v{vQT}, s{sT}, v{vQT}')
    A(f'v_add_u32 v{vKT}, 2048, v{vQT}')
    A(f'v_lshlrev_b32 v{vVR}, 3, v{vI}')
    A(f'v_lshl_add_u32 v{vVR}, v{vHf}, 2, v{vVR}')
    A(f'v_add_u32 v{vVR}, s{sT}, v{vVR}')
    A(f'v_lshl_add_u32 v{vPR}, v{vT1}, 8, v{vT0}')
    A(f's_add_u32 s{sT2}, s{sSC}, {POFF}')
    A(f'v_add_u32 v{vPR}, s{sT2}, v{vPR}')
    A(f'v_lshrrev_b32 v{vT1}, 2, v{vI}')
    A(f'v_xor_b32 v{vT1}, v{vT1}, v{vI}')
    A(f'v_and_b32 v{vT1}, 4, v{vT1}')
    A(f'v_and_or_b32 v{vT1}, v{vI}, 2, v{vT1}')
    A(f'v_cmp_eq_u32 vcc, 0, v{vT1}')
    A(f'v_mov_b32 v{vT1}, {LDS_Z}')
    A(f'v_cndmask_b32 v{vQT}, v{vT1}, v{vQT}, vcc')
    A(f'v_cndmask_b32 v{vKT}, v{vT1}, v{vKT}, vcc')
    A(f'v_cndmask_b32 v{vPR}, v{vT1}, v{vPR}, vcc')
    A(f'v_bfe_u32 v{vT0}, v{vI}, 1, 2')
    A(f'v_xor_b32 v{vT0}, v{vT0}, v{vHf}')
    A(f'v_lshlrev_b32 v{vT0}, 4, v{vT0}')
    A(f'v_lshl_add_u32 v{vOW}, v{vI}, 6, v{vT0}')
    A(f'v_add_u32 v{vOW}, s{sSC}, v{vOW}')
    A(f'v_xor_b32 v{vOW2}, 32, v{vOW}')
    A(f'v_lshrrev_b32 v{vT0}, 3, v{vLane}')
    A(f'v_xor_b32 v{vT0}, v{vT0}, v{vLane}')
    A(f'v_and_b32 v{vT0}, 3, v{vT0}')
    A(f'v_lshlrev_b32 v{vT0}, 4, v{vT0}')
    A(f'v_lshrrev_b32 v{vT1}, 2, v{vLane}')
    A(f'v_lshl_add_u32 v{vOR}, v{vT1}, 6, v{vT0}')
    A(f'v_add_u32 v{vOR}, s{sSC}, v{vOR}')
    A(f's_lshl_b32 s{sM1}, s{sH}, 6')
    A(f'v_and_b32 v{vT0}, 3, v{vLane}')
    A(f'v_lshlrev_b32 v{vT0}, 4, v{vT0}')
    A(f'v_lshl_add_u32 v{vOffO}, v{vT1}, 7, v{vT0}')
    A(f'v_add_u32 v{vOffO}, s{sM1}, v{vOffO}')
    A(f'v_and_b32 v{vT0}, 0x13, v{vI}')
    A(f'v_bfe_u32 v{vT1}, v{vI}, 2, 1')
    A(f'v_lshl_add_u32 v{vT0}, v{vT1}, 3, v{vT0}')
    A(f'v_bfe_u32 v{vT1}, v{vI}, 3, 1')
    A(f'v_lshl_add_u32 v{vT0}, v{vT1}, 2, v{vT0}')
    A(f'v_lshlrev_b32 v{vT0}, 1, v{vT0}')
    A(f'v_lshl_add_u32 v{vOffOT}, v{vHf}, 8, v{vT0}')
    A(f'v_add_u32 v{vOffOT}, s{sM1}, v{vOffOT}')
    A(f'v_add_u32 v{vOffOT}, {96*128}, v{vOffOT}')
    A(f'v_lshl_add_u32 v{vPW}, v{vHf}, 9, v{vT0}')
    A(f'v_add_u32 v{vPW}, s{sT2}, v{vPW}')
    A(f'v_bfe_u32 v{vT0}, v{vI}, 3, 1')
    A(f'v_and_b32 v{vT1}, 3, v{vI}')
    A(f'v_lshl_add_u32 v{vT0}, v{vT0}, 3, v{vT1}')
    A(f'v_lshlrev_b32 v{vT0}, 1, v{vT0}')
    A(f'v_add_u32 v{vT0}, 192, v{vT0}')
    A(f'v_and_b32 v{vT1}, 0x14, v{vI}')
    A(f'v_cmp_eq_u32 vcc, 0, v{vT1}')
    A(f'v_mov_b32 v{vT1}, 240')
    A(f'v_cndmask_b32 v{vT0}, v{vT1}, v{vT0}, vcc')
    A(f'v_lshl_add_u32 v{vPWT}, v{vHf}, 9, v{vT0}')
    A(f'v_add_u32 v{vPWT}, s{sT2}, v{vPWT}')
    A(f'v_mov_b32 v{vChk}, 0')
    A(f'v_lshrrev_b32 v{vT0}, 2, v{vLane}'); A(f'v_xor_b32 v{vT0}, v{vT0}, v{vLane}'); A(f'v_and_b32 v{vT0}, 4, v{vT0}')
    A(f'v_cmp_eq_u32 vcc, 0, v{vT0}'); A(f'v_mov_b32 v{vT1}, 0x3f803f80')
    A(f'v_cndmask_b32 {ONES(0)}, 0, v{vT1}, vcc')
    for k in (1, 2, 3): A(f'v_mov_b32 {ONES(k)}, {ONES(0)}')
    A(f'v_and_b32 v{vT0}, 15, v{vLane}')
    A(f'v_lshrrev_b32 v{vT2}, 4, v{vLane}')
    A(f'v_lshlrev_b32 v{vT1}, 9, v{vT2}')
    A(f'v_lshl_add_u32 v{vT1}, v{vT0}, 4, v{vT1}')
    A(f'v_add_u32 v{vWn}, s{sBlk}, v{vT1}')
    A(f'v_and_b32 v{vT1}, 1, v{vLane}')
    A(f'v_xor_b32 v{vT2}, v{vT2}, v{vT1}')
    A(f'v_lshlrev_b32 v{vT2}, 4, v{vT2}')
    A(f'v_lshl_add_u32 v{vT2}, v{vT1}, 7, v{vT2}')
    A(f'v_lshrrev_b32 v{vT1}, 1, v{vT0}')
    A(f'v_mul_u32_u24 v{vT1}, 288, v{vT1}')
    A(f'v_add3_u32 v{vT2}, v{vT2}, v{vT1}, s{sTE}')
    A(f's_cmp_ge_u32 s{sW}, 4')
    A(f's_cselect_b64 vcc, -1, 0')
    for u in range(2):
        for s2 in range(2):
            A(f'v_add_u32 v{vPf+0}, {s2*2048 + u*256}, v{vWn}' if False else f'v_add_u32 v{vD2}, {s2*2048 + u*256}, v{vWn}')
            A(f'v_add_u32 v{vT1}, {s2*64}, v{vT2}')
            A(f'v_cndmask_b32 v{vXY + 2*u + s2}, v{vD2}, v{vT1}, vcc')
            A(f'v_cndmask_b32 v{vXY + 4 + 2*u + s2}, v{vT1}, v{vD2}, vcc')
    A(f'v_and_b32 v{vT1}, 16, v{vLane}')
    A(f'v_lshl_add_u32 v{vT1}, v{vT0}, 6, v{vT1}')
    A(f'v_lshl_add_u32 v{vT1}, v{vHf}, 3, v{vT1}')
    A(f'v_lshrrev_b32 v{vT2}, 4, v{vLane}')
    A(f'v_lshlrev_b32 v{vT2}, 8, v{vT2}')
    A(f'v_lshl_add_u32 v{vT2}, v{vT0}, 3, v{vT2}')
    A(f'v_cndmask_b32 v{vT1}, v{vT1}, v{vT2}, vcc')
    A(f's_add_u32 s{sT}, s{sW1k}, {LDS_T}')
    A(f'v_add_u32 v{vXY+8}, s{sT}, v{vT1}')
    A(f's_cmp_ge_u32 s{sW}, 4')
    A(f's_cselect_b32 s{sT}, 128, 32')
    A(f'v_add_u32 v{vXY+9}, s{sT}, v{vXY+8}')
    for k in range(4):
        A(f'v_lshlrev_b32 v{vQ+4}, 16, v{vQ+k}')
        A(f'v_and_b32 v{vQ+5}, 0xffff0000, v{vQ+k}')
        A(f'v_mul_f32 v{vQ+4}, s{sC}, v{vQ+4}')
        A(f'v_mul_f32 v{vQ+5}, s{sC}, v{vQ+5}')
        A(f'v_cvt_pk_bf16_f32 v{vQ+k}, v{vQ+4}, v{vQ+5}')
    A(f'ds_write_b128 v{vL16}, v[{vQ}:{vQ+3}] offset:{LDS_W}')
    stamp()
    A(f's_waitcnt vmcnt({3+npf}) lgkmcnt(0)')
    A('s_barrier')
    stamp()
    for s in range(4):
        for z in range(2):
            b = vWF + 4*s + 2*z
            A(f'ds_read_b64_tr_b16 v[{b}:{b+1}], v{vWx} offset:{s*1024 + z*256}')
    A.extend(edma(1))
    q4 = lambda b: f'v[{b}:{b+3}]'
    for s in range(4): A(f'ds_write_b128 v{vRs}, {q4(vWF+4*s)} offset:{1024*s}')
    stamp()
    A(f's_waitcnt vmcnt(2) lgkmcnt(0)')
    A('s_barrier')
    stamp()
    A.extend(edma(2))
    if opts.get('solo'):
        A(f's_cmp_lt_u32 s{sW}, 4')
        A('s_cbranch_scc1 L_main')
        A('s_waitcnt vmcnt(0)')
        A('s_barrier')
        A('s_barrier')
        A('s_branch L_done')
        A('L_main:')

    def build(safe):
        VRs = VRegs(); N = VRs.new
        X = []
        def chain(op, D, nd, pairs, first=True):
            for k, (a, b) in enumerate(pairs):
                cc = '0' if (k == 0 and first) else D(0, nd)
                X.append(f'{op} {D(0,nd)}, {a}, {b}, {cc}')
        def cvt(dst, do, src, so, n):
            for x in range(n): X.append(f'v_cvt_pk_bf16_f32 {dst(do+x)}, {src(so+2*x)}, {src(so+2*x+1)}')
        def wread(mat):
            W = N('W', 16)
            for s in range(4): X.append(f'ds_read_b128 {W(4*s,4)}, v{vWr} offset:{LDS_W + mat*8192 + s*1024}')
            return W
        def eread(t):
            E = N('E', 16)
            for s in range(4): X.append(f'ds_read_b128 {E(4*s,4)}, v{vEA[s]} offset:{4096*t}')
            return E
        def tread(va):
            R = N('TT', 8)
            for u in range(2): X.append(f'ds_read_b128 {R(4*u,4)}, v{va} offset:{32*u}')
            return R
        def vtread():
            X.append(f'ds_read_b32 {VT(0)}, v{vVR} offset:4096')
        def rtread():
            T = N('RT', 2)
            X.append(f'ds_read_b32 {T(1)}, v{vVR} offset:6144')
            X.append(f'v_lshlrev_b32 {T(0)}, 16, {T(1)}')
            X.append(f'v_and_b32 {T(1)}, 0xffff0000, {T(1)}')
            return T
        def tailproj():
            XY = VRs.pin('XY', vXY, 10)
            XO = N('XO', 16); YO = N('YO', 16); D = N('TD', 8)
            for k in range(4):
                X.append(f'ds_read_b128 {XO(4*k,4)}, {XY(k)}')
                X.append(f'ds_read_b128 {YO(4*k,4)}, {XY(4+k)}')
            for s2 in range(2):
                for u in range(2):
                    k = 2*u + s2
                    X.append(f'{M16} {D(4*u,4)}, {XO(4*k,4)}, {YO(4*k,4)}, {"0" if s2 == 0 else D(4*u,4)}')
            for u in range(2):
                X.append(f'v_cvt_pk_bf16_f32 {D(4*u)}, {D(4*u)}, {D(4*u+1)}')
                X.append(f'v_cvt_pk_bf16_f32 {D(4*u+1)}, {D(4*u+2)}, {D(4*u+3)}')
                X.append(f'ds_write_b64 {XY(8+u)}, {D(4*u,2)}')
        def projT(W, E, tobf=True):
            T = N('T', 16)
            chain(M32, T, 16, [(W(4*s,4), E(4*s,4)) for s in range(4)])
            if not tobf: return T
            R = N('R', 8); cvt(R, 0, T, 0, 8); return R
        def projV(E, W):
            T = N('T', 16)
            chain(M32, T, 16, [(E(4*s,4), W(4*s,4)) for s in range(4)])
            R = N('R', 8); cvt(R, 0, T, 0, 8); return R
        K = {}; V = {}; Q = {}; ctx = {}; l = {}; started = set()
        def smm(t, g):
            if g < 3:
                S = N('S', 16); chain(M32, S, 16, [(K[g](4*u,4), Q[t](4*u,4)) for u in range(2)])
            else:
                S = N('SG', 4); chain(M16, S, 4, [(K[3](4*u,4), Q[t](4*u,4)) for u in range(2)])
            return S
        def pv(t, g, S):
            if t not in ctx: ctx[t] = N('C', 16); l[t] = N('L', 4)
            c = ctx[t]; ll = l[t]
            if g == 3:
                X.append(f'v_exp_f32 {S(0)}, {S(0)}'); X.append(f'v_exp_f32 {S(1)}, {S(1)}')
                X.append(f'v_cvt_pk_bf16_f32 {PT(0)}, {S(0)}, {S(1)}')
                f = t not in started; started.add(t)
                X.append(f'{M32h} {c(0,16)}, {VT(0,2)}, {PT(0,2)}, {"0" if f else c(0,16)}')
                X.append(f'{M16h} {ll(0,4)}, {ONES(0,2)}, {PT(0,2)}, {"0" if f else ll(0,4)}')
                return
            for u in range(2):
                for r in range(8): X.append(f'v_exp_f32 {S(8*u+r)}, {S(8*u+r)}')
                cvt(S, 8*u, S, 8*u, 4)
                f = t not in started; started.add(t)
                X.append(f'{M32} {c(0,16)}, {V[g](4*u,4)}, {S(8*u,4)}, {"0" if f else c(0,16)}')
                X.append(f'{M16} {ll(0,4)}, {ONES(0,4)}, {S(8*u,4)}, {"0" if f else ll(0,4)}')
        def epi(t, RES):
            c = ctx[t]; ll = l[t]
            X.append(f'v_rcp_f32 {ll(1)}, {ll(0)}')
            if not safe:
                X.append(f'v_subrev_u32 {ll(2)}, s{sLO}, {ll(0)}')
                X.append(f'v_max_u32 v{vChk}, v{vChk}, {ll(2)}')
            for r in range(16): X.append(f'v_fma_f32 {c(r)}, {c(r)}, {ll(1)}, {RES(r)}')
            cvt(c, 0, c, 0, 8)
            for r in range(8): X.append(f'v_pk_max_i16 {c(r)}, {c(r)}, 0')
            X.append(f'ds_write_b128 v{vOW}, {c(0,4)}')
            X.append(f'ds_write_b128 v{vOW2}, {c(4,4)}')
            for y in range(2): X.append(f'ds_read_b128 {c(8+4*y,4)}, v{vOR} offset:{1024*y}')
            so = ['0', f's{s4096}', f's{s8192}'][t]
            for y in range(2):
                X.append(f'buffer_store_dwordx4 {c(8+4*y,4)}, v{vOffO}, {srd(SRD_O)}, {so} offen offset:{2048*y}{stpol}')
        def fs_mm(SF, o, g):
            for u in range(2):
                X.append(f'{M16} {SF(o,4)}, {Q[3](4*u,4)}, {K[g](4*u,4)}, {"0" if u == 0 else SF(o,4)}')
        def fs_exp(SF, b, g):
            X.append(f'v_exp_f32 {SF(b)}, {SF(b)}'); X.append(f'v_exp_f32 {SF(b+1)}, {SF(b+1)}')
            X.append(f'v_cvt_pk_bf16_f32 {SF(b)}, {SF(b)}, {SF(b+1)}')
            va, off = (vPW, 64*g) if g < 3 else (vPWT, 0)
            X.append(f'ds_write_b16 v{va}, {SF(b)} offset:{off}')
            X.append(f'ds_write_b16_d16_hi v{va}, {SF(b)} offset:{off+256}')
        def fs(g):
            SF = N('SF', 4); fs_mm(SF, 0, g); fs_exp(SF, 0, g)
        def ftail_safe():
            SF = N('SF', 16)
            for g in range(4): fs_mm(SF, 4*g, g)
            M = N('M', 2)
            X.append(f'v_and_b32 {M(0)}, 0x16, v0')
            X.append(f'v_cmp_eq_u32 vcc, 0, {M(0)}')
            for r in range(2):
                m = M(r)
                X.append(f'v_cndmask_b32 {m}, {SF(r)}, {SF(12+r)}, vcc')
                X.append(f'v_max3_f32 {m}, {m}, {SF(r)}, {SF(4+r)}')
                X.append(f'v_max_f32 {m}, {m}, {SF(8+r)}')
                for sh in (1, 2, 4, 8):
                    X.append(f'v_max_f32_dpp {m}, {m}, {m} row_ror:{sh} row_mask:0xf bank_mask:0xf')
                X.append(f'v_mov_b32 {SF(2)}, {m}')
                X.append(f'v_permlane16_swap_b32 {m}, {SF(2)}')
                X.append(f'v_max_f32 {m}, {m}, {SF(2)}')
                for g in range(4): X.append(f'v_sub_f32 {SF(4*g+r)}, {SF(4*g+r)}, {m}')
                X.append(f'v_min_f32 {SF(12+r)}, 0, {SF(12+r)}')
            for g in range(4): fs_exp(SF, 4*g, g)
        def ftail_read():
            PS = N('PS', 24); PST = N('PST', 2)
            X.append(f'ds_read_b64 {PST(0,2)}, v{vPR} offset:192')
            for ks in range(6): X.append(f'ds_read_b128 {PS(4*ks,4)}, v{vPR} offset:{32*ks}')
            return PS, PST
        def ftail_pv(PS, PST, RT):
            ONA = N('ONA', 8); CT = N('CT', 4); LT = N('LT', 4)
            for k in range(5): X.append(f'v_mov_b32 {ONA(k)}, 0x3f803f80')
            X.append(f'v_mov_b32 {ONA(5)}, 0')
            X.append(f'{M16h} {CT(0,4)}, {PST(0,2)}, {VT(0,2)}, 0')
            X.append(f'{M16h} {LT(0,4)}, {PST(0,2)}, {ONA(4,2)}, 0')
            for ks in range(6):
                X.append(f'{M16} {CT(0,4)}, {PS(4*ks,4)}, {V[ks>>1](4*(ks&1),4)}, {CT(0,4)}')
                X.append(f'{M16} {LT(0,4)}, {PS(4*ks,4)}, {ONA(0,4)}, {LT(0,4)}')
            for r in range(2):
                X.append(f'v_rcp_f32 {LT(2+r)}, {LT(r)}')
                if not safe:
                    X.append(f'v_subrev_u32 {LT(r)}, s{sLO}, {LT(r)}')
                    X.append(f'v_max_u32 v{vChk}, v{vChk}, {LT(r)}')
                X.append(f'v_fma_f32 {CT(r)}, {CT(r)}, {LT(2+r)}, {RT(r)}')
            X.append(f'v_cvt_pk_bf16_f32 {CT(0)}, {CT(0)}, {CT(1)}')
            X.append(f'v_pk_max_i16 {CT(0)}, {CT(0)}, 0')
            X.append(f'buffer_store_short {CT(0)}, v{vOffOT}, {srd(SRD_O)}, 0 offen{stpol}')
            X.append(f'buffer_store_short_d16_hi {CT(0)}, v{vOffOT}, {srd(SRD_O)}, 0 offen offset:128{stpol}')
        def sync(n, after=None):
            X.append(f's_waitcnt vmcnt({n}) lgkmcnt(0)' + (f' ;;after {after}' if after else ''))
            X.append('s_barrier')

        if safe:
            WK = wread(1); WV = wread(2)
            for t in range(3):
                E = eread(t)
                K[t] = projT(WK, E)
                V[t] = projV(E, WV)
            K[3] = tread(vKT); vtread()
            WQ = wread(0); WR = wread(3)
            for t in range(3):
                E = eread(t)
                Q[t] = projT(WQ, E)
                RES = projT(WR, E, False)
                Ss = [smm(t, g) for g in range(4)]
                M = N('M', 2)
                regs = [Ss[g](r) for g in range(3) for r in range(16)] + [Ss[3](0), Ss[3](1)]
                X.append(f'v_max_f32 {M(0)}, {regs[0]}, {regs[1]}')
                for k in range(2, 50, 2): X.append(f'v_max3_f32 {M(0)}, {regs[k]}, {regs[k+1]}, {M(0)}')
                X.append(f'v_mov_b32 {M(1)}, {M(0)}')
                X.append(f'v_permlane32_swap_b32 {M(0)}, {M(1)}')
                X.append(f'v_max_f32 {M(0)}, {M(0)}, {M(1)}')
                for r in regs: X.append(f'v_sub_f32 {r}, {r}, {M(0)}')
                for g in (3, 0, 1, 2): pv(t, g, Ss[g])
                epi(t, RES)
            Q[3] = tread(vQT); RT = rtread()
            ftail_safe(); PS, PST = ftail_read(); ftail_pv(PS, PST, RT)
        else:
            hold = opts.get('hold', 0)
            WK = wread(1); E0 = eread(0); WQ = wread(0)
            tailproj()
            WV = wread(2)
            K[0] = projT(WK, E0); Q[0] = projT(WQ, E0)
            sync(2, K[0](0)); E1 = eread(1)
            K[3] = tread(vKT); vtread(); Q[3] = tread(vQT)
            S = smm(0, 0)
            V[0] = projV(E0, WV)
            S2 = smm(0, 3)
            fs(3)
            fs(0)
            pv(0, 3, S2)
            Q[1] = projT(WQ, E1)
            pv(0, 0, S)
            S2 = smm(1, 3)
            S = smm(1, 0)
            K[1] = projT(WK, E1)
            pv(1, 3, S2)
            pv(1, 0, S)
            S = smm(0, 1)
            V[1] = projV(E1, WV)
            sync(0, K[1](0)); E2 = eread(2)
            fs(1)
            pv(0, 1, S)
            S = smm(1, 1)
            K[2] = projT(WK, E2)
            WR = wread(3)
            pv(1, 1, S)
            S = smm(0, 2)
            V[2] = projV(E2, WV)
            if not (hold & 1): E0 = eread(0)
            fs(2)
            pv(0, 2, S)
            S = smm(1, 2)
            RES = projT(WR, E0, False)
            if not (hold & 2): E1 = eread(1)
            Q[2] = projT(WQ, E2)
            epi(0, RES)
            pv(1, 2, S)
            S2 = smm(2, 3)
            S = smm(2, 0)
            RES = projT(WR, E1, False)
            PS, PST = ftail_read(); RT = rtread()
            pv(2, 3, S2)
            epi(1, RES)
            pv(2, 0, S)
            S = smm(2, 1)
            ftail_pv(PS, PST, RT)
            if not (hold & 4): E2 = eread(2)
            pv(2, 1, S)
            S = smm(2, 2)
            RES = projT(WR, E2, False)
            pv(2, 2, S)
            epi(2, RES)
        prog, base = allocate(X, VRs, FREE, verbose=True)
        return prog

    fast = build(False)
    asmlib.LAT_SCALE = opts.get('lat', 100) / 100.0
    asmlib.DS_COST = opts.get('dsc', 4)
    fast = schedule(fast, verbose=True, window=opts.get('window', 150))
    if opts.get('prio'):
        bars = [i for i, t in enumerate(fast) if t.startswith('s_barrier')]
        segs = [0] + [b + 1 for b in bars] + [len(fast)]
        fr = {1: (0.4, 0.7, 0.9), 2: (0.25, 0.5, 0.75), 3: (0.5, 0.8, 0.93), 4: (0.33, 0.62, 0.85)}[opts['prio']]
        ins = {}
        for a, b in zip(segs[:-1], segs[1:]):
            ins[a] = 3
            for k, f in enumerate(fr): ins[a + int((b - a) * f)] = 2 - k
        nf = []
        for i, t in enumerate(fast):
            if i in ins: nf.append(f's_setprio {ins[i]}')
            nf.append(t)
        fast = nf
    if opts.get('loop'):
        drop = opts.get('drop', 0)
        keep = []
        for t in fast:
            i = Ins(t)
            if i.kind in ('vmstore', 'sync'): continue
            if (drop & 1) and i.kind in ('dsread', 'dswrite'): continue
            if (drop & 2) and i.kind == 'valu': continue
            if (drop & 4) and i.kind == 'trans': continue
            if (drop & 8) and i.kind == 'mfma': continue
            keep.append(t)
        A('s_waitcnt vmcnt(0)')
        A('s_barrier')
        A('s_barrier')
        A(f's_mov_b32 s{sT}, {opts["loop"]}')
        stamp()
        A('L_loop:')
        A.extend(keep)
        A('s_waitcnt lgkmcnt(0)')
        A('s_nop 15')
        A(f's_cmp_eq_u32 s{sT}, {opts["loop"]}')
        A('s_cbranch_scc0 L_nost')
        stamp()
        A('s_waitcnt lgkmcnt(0)')
        A('L_nost:')
        A(f's_sub_u32 s{sT}, s{sT}, 1')
        A(f's_cmp_lg_u32 s{sT}, 0')
        A('s_cbranch_scc1 L_loop')
    else:
        A('L_fast:')
        A.extend(fast)
        A('L_fastend:')
    if opts.get('solo'): A('L_done:')
    stamp()
    vT0, vT1 = 28, 29
    if opts.get('stamps'):
        A('s_waitcnt vmcnt(0)')
        stamp()
        A('s_load_dwordx2 s[52:53], s[0:1], 56')
        A('s_waitcnt lgkmcnt(0)')
        A('s_mov_b32 s54, 0x1000000')
        A('s_mov_b32 s55, 0x20000')
        A(f's_lshl_b32 s3, s2, 3')
        A(f's_add_u32 s3, s3, s{sW}')
        A(f's_lshl_b32 s3, s3, 7')
        A(f'v_mov_b32 v{vT0}, s3')
        for k in range(nst[0]):
            A(f'v_mov_b32 v{vT1}, s{56+4*k}')
            A(f'buffer_store_dword v{vT1}, v{vT0}, s[52:55], 0 offen offset:{4*k}')
            A(f'v_mov_b32 v{vT1}, s{58+4*k}')
            A(f'buffer_store_dword v{vT1}, v{vT0}, s[52:55], 0 offen offset:{64+4*k}')
    A(f's_mov_b32 s{sT}, 0x{80<<23:08x}')
    A(f'v_cmp_le_u32 vcc, s{sT}, v{vChk}')
    if opts.get('force_safe'): A('s_mov_b64 vcc, -1')
    A('s_nop 4')
    A('s_cbranch_vccnz L_safe')
    A('L_end:')
    A('s_endpgm')
    A('L_safe:')
    A('s_waitcnt vmcnt(0) lgkmcnt(0)')
    A('s_nop 15')
    A('s_nop 15')
    A.extend(build(True))
    A('s_endpgm')
    txt = A.text()
    print('nops inserted:', A.nops, 'stamps', nst[0], file=sys.stderr)
    out = HEADER + f'; @launch grid=(256,1,1) block=(512,1,1) lds={lds_total}\n'
    out += '.amdgcn_target "amdgcn-amd-amdhsa--gfx950"\n.text\n'
    out += f'.globl {KNAME}\n.p2align 8\n.type {KNAME},@function\n'
    out += txt
    out += f""".section .rodata,"a"
.p2align 6
.amdhsa_kernel {KNAME}
  .amdhsa_next_free_vgpr 256
  .amdhsa_next_free_sgpr 102
  .amdhsa_accum_offset 256
  .amdhsa_group_segment_fixed_size 0
  .amdhsa_kernarg_size 64
  .amdhsa_user_sgpr_count 2
  .amdhsa_user_sgpr_kernarg_segment_ptr 1
  .amdhsa_system_sgpr_workgroup_id_x 1
.end_amdhsa_kernel
"""
    return out

if __name__ == '__main__':
    opts = {}
    outp = sys.argv[1]
    for a in sys.argv[2:]:
        k, v = a.split('=')
        opts[k] = int(v)
    open(outp, 'w').write(gen(opts))
```

```python
import re

TRANS = ('v_exp_f32', 'v_log_f32', 'v_rcp_f32', 'v_rsq_f32', 'v_sqrt_f32', 'v_sin_f32', 'v_cos_f32')

def parse_regs(tok, pfx):
    tok = tok.strip()
    tok = tok.lstrip('-')
    if tok.startswith('abs(') or tok.startswith('|'):
        tok = tok.replace('abs(', '').replace(')', '').replace('|', '')
    m = re.fullmatch(pfx + r'(\d+)', tok)
    if m: return [int(m.group(1))]
    m = re.fullmatch(pfx + r'\[(\d+):(\d+)\]', tok)
    if m: return list(range(int(m.group(1)), int(m.group(2)) + 1))
    return []

class Ins:
    def __init__(self, text):
        self.text = text.strip()
        t = self.text.split(';')[0].strip()
        self.is_label = t.endswith(':')
        parts = t.split(None, 1)
        self.op = parts[0] if parts else ''
        rest = parts[1] if len(parts) > 1 else ''
        ops = [o.strip() for o in rest.split(',')] if rest else []
        self.mods = ''
        if ops:
            sp = ops[-1].split(None, 1)
            if len(sp) > 1:
                ops[-1] = sp[0]; self.mods = sp[1]
        self.ops = ops
        op = self.op
        self.vr, self.vw, self.sr, self.sw = set(), set(), set(), set()
        self.srcC = set(); self.srcAB = set()
        self.kind = 'other'
        V = lambda o: parse_regs(o, 'v')
        S = lambda o: parse_regs(o, 's') + ([106, 107] if o == 'vcc' else []) + ([124] if o == 'm0' else []) + ([126,127] if o == 'exec' else [])
        if self.is_label:
            self.kind = 'label'
        elif op.startswith('v_mfma'):
            self.kind = 'mfma'
            self.passes = 8 if '32x32x16' in op or '32x32x8' in op else 4
            self.vw = set(V(ops[0])); self.srcAB = set(V(ops[1]) + V(ops[2])); self.srcC = set(V(ops[3]))
            self.vr = self.srcAB | self.srcC
            self.dlist = V(ops[0]); self.clist = V(ops[3])
        elif op.startswith('v_cmp'):
            self.kind = 'valu'
            self.sw = set(S(ops[0]))
            for o in ops[1:]: self.vr |= set(V(o)); self.sr |= set(S(o))
        elif op.startswith('v_readfirstlane') or op.startswith('v_readlane'):
            self.kind = 'valu'; self.readlane = True
            self.sw = set(S(ops[0])); self.vr = set(V(ops[1]))
        elif op.startswith('v_permlane'):
            self.kind = 'valu'; self.permlane = True
            self.vw = set(V(ops[0]) + V(ops[1])); self.vr = set(self.vw)
        elif op.startswith('v_'):
            self.kind = 'trans' if op.replace('_e32','').replace('_e64','') in TRANS else 'valu'
            self.vw = set(V(ops[0]))
            for o in ops[1:]: self.vr |= set(V(o)); self.sr |= set(S(o))
            if op.startswith('v_fmac') or op.startswith('v_pk_fmac') or 'dst_unused:UNUSED_PRESERVE' in self.mods: self.vr |= self.vw
            if op.startswith('v_cndmask') and len(ops) == 3: self.sr |= {106,107}
            if '_dpp' in op or 'row_' in self.mods or 'quad_perm' in self.mods:
                self.dpp = True; self.vr |= self.vw
        elif op.startswith('buffer_load') or op.startswith('global_load'):
            self.kind = 'vmload'
            if 'lds' in self.mods.split() or op.startswith('global_load_lds'):
                for o in ops: self.vr |= set(V(o)); self.sr |= set(S(o))
                self.sr |= {124}; self.ldsdma = True
            else:
                self.vw = set(V(ops[0]))
                if 'd16' in op: self.vr |= self.vw
                for o in ops[1:]: self.vr |= set(V(o)); self.sr |= set(S(o))
        elif op.startswith('buffer_store') or op.startswith('global_store') or op.startswith('buffer_atomic'):
            self.kind = 'vmstore'
            for o in ops: self.vr |= set(V(o)); self.sr |= set(S(o))
            self.wide = ('x4' in op or 'x3' in op)
            self.data = set(V(ops[0])) if op.startswith('buffer') else set(V(ops[1]))
        elif op.startswith('ds_read') or op.startswith('ds_bpermute') or op.startswith('ds_swizzle') or op.startswith('ds_permute'):
            self.kind = 'dsread'
            self.vw = set(V(ops[0]))
            if 'd16' in op: self.vr |= self.vw
            for o in ops[1:]: self.vr |= set(V(o))
        elif op.startswith('ds_write'):
            self.kind = 'dswrite'
            for o in ops: self.vr |= set(V(o))
        elif op.startswith('s_load') or op.startswith('s_memtime') or op.startswith('s_memrealtime'):
            self.kind = 'smem'
            self.sw = set(S(ops[0]))
            for o in ops[1:]: self.sr |= set(S(o))
        elif op.startswith('s_nop'):
            self.kind = 'nop'; self.n = int(ops[0], 0) + 1
        elif op.startswith('s_waitcnt') or op in ('s_barrier', 's_endpgm', 's_setprio', 's_sleep'):
            self.kind = 'sync'
            m = re.search(r';;after (.*)$', self.text)
            self.after = set()
            if m:
                for o in m.group(1).split(): self.after |= set(V(o))
        elif op.startswith('s_cbranch') or op.startswith('s_branch') or op.startswith('s_setpc') or op.startswith('s_swappc'):
            self.kind = 'branch'
        elif op.startswith('s_'):
            self.kind = 'salu'
            if op.startswith('s_cmp') or op.startswith('s_bitcmp'):
                for o in ops: self.sr |= set(S(o))
            else:
                self.sw = set(S(ops[0]))
                for o in ops[1:]: self.sr |= set(S(o))
                if 'saveexec' in op: self.sw |= {126,127}
    def isvalu(self): return self.kind in ('valu', 'trans')
    def states(self):
        if self.kind == 'nop': return self.n
        if self.kind == 'label' or not self.op or self.op.startswith('.') or self.op.startswith(';'): return 0
        return 1

def required_gap(p, c):
    g = 0
    if p.isvalu():
        if c.kind == 'mfma' and (p.vw & c.vr): g = max(g, 2)
        if p.kind == 'trans' and c.kind == 'valu' and (p.vw & (c.vr | c.vw)): g = max(g, 1)
        if p.kind == 'trans' and c.kind in ('vmstore', 'dswrite', 'vmload', 'dsread') and (p.vw & c.vr): g = max(g, 1)
        if getattr(c, 'permlane', False) and (p.vw & c.vr): g = max(g, 2)
        if getattr(c, 'dpp', False) and (p.vw & c.vr): g = max(g, 2)
        if getattr(c, 'readlane', False) and (p.vw & c.vr): g = max(g, 1)
        if p.sw:
            if c.isvalu() and (p.sw & c.sr): g = max(g, 4 if getattr(c,'readlane',False) else 2)
            if c.kind in ('vmload', 'vmstore') and (p.sw & c.sr): g = max(g, 5)
            if c.kind in ('salu','branch','smem') and (p.sw & c.sr or c.kind=='branch'): g = max(g, 1)
            if ({126,127} & p.sw):
                if c.kind == 'mfma': g = max(g, 4)
                if getattr(c, 'dpp', False): g = max(g, 5)
                if getattr(c, 'permlane', False) or getattr(c, 'readlane', False): g = max(g, 4)
        if 'op_sel' in p.mods or 'sel:' in p.mods:
            if c.isvalu() and (p.vw & (c.vr | c.vw)): g = max(g, 1)
    if p.kind == 'mfma':
        P = p.passes
        full = {2: 5, 4: 8, 8: 12, 16: 20}[P]
        if c.kind == 'mfma':
            if p.vw & c.srcAB: g = max(g, full)
            if p.vw & c.srcC:
                if c.clist == p.dlist and c.op == p.op: g = max(g, 2 if P == 2 else 0)
                else: g = max(g, {2: 4, 4: 6, 8: 10, 16: 18}[P])
            elif p.vw & c.vw:
                if not (c.passes >= P): g = max(g, full)
        elif c.isvalu() or c.kind in ('vmload', 'vmstore', 'dsread', 'dswrite'):
            if p.vw & (c.vr | c.vw): g = max(g, full)
            if c.isvalu() and (p.srcC & c.vw): g = max(g, {2: 1, 4: 3, 8: 7, 16: 15}[P])
            if c.kind in ('vmload','dsread') and (p.srcC & c.vw): g = max(g, {2: 1, 4: 3, 8: 7, 16: 15}[P])
    if p.kind == 'vmstore' and p.wide:
        if (p.data & c.vw): g = max(g, 2 if c.isvalu() or c.kind=='mfma' else 1)
    if p.kind == 'salu' and 124 in p.sw and getattr(c, 'ldsdma', False): g = max(g, 1)
    if p.kind == 'salu' and ({126,127} & p.sw):
        pass
    return g

class Asm:
    def __init__(self):
        self.items = []
    def __call__(self, text):
        for line in text.split('\n'):
            if line.strip(): self.items.append(Ins(line))
    def extend(self, lst):
        for t in lst: self(t)
    def finalize(self, auto_wait=True):
        out = []
        vm = []
        lg = []
        nops = 0
        for ins in self.items:
            if auto_wait:
                touch = ins.vr | ins.vw
                need_vm = None; need_lg = None
                for k, regs in enumerate(vm):
                    if regs & touch: need_vm = len(vm) - 1 - k
                for k, (regs, sregs) in enumerate(lg):
                    if (regs & touch): need_lg = len(lg) - 1 - k
                    if sregs and (sregs & (ins.sr | ins.sw)): need_lg = 0
                if need_lg is not None and any(s for _, s in lg): need_lg = 0
                if need_vm is not None or need_lg is not None:
                    w = 's_waitcnt'
                    if need_vm is not None:
                        w += f' vmcnt({min(need_vm,63)})'; vm = vm[len(vm) - need_vm:] if need_vm else []
                    if need_lg is not None:
                        w += f' lgkmcnt({min(need_lg,15)})'; lg = lg[len(lg) - need_lg:] if need_lg else []
                    out.append(Ins(w))
                if ins.op == 's_waitcnt':
                    m = re.search(r'vmcnt\((\d+)\)', ins.text)
                    if m:
                        n = int(m.group(1)); vm = vm[len(vm) - n:] if n and n < len(vm) else ([] if n == 0 else vm)
                    m = re.search(r'lgkmcnt\((\d+)\)', ins.text)
                    if m:
                        n = int(m.group(1)); lg = lg[len(lg) - n:] if n and n < len(lg) else ([] if n == 0 else lg)
            need = 0; dist = 0
            for p in reversed(out[-40:]):
                g = required_gap(p, ins)
                if g > dist: need = max(need, g - dist)
                dist += p.states()
                if dist >= 24: break
            while need > 0:
                k = min(need, 16); out.append(Ins(f's_nop {k-1}')); need -= k; nops += k
            out.append(ins)
            if ins.kind in ('vmload', 'vmstore'): vm.append(set(ins.vw))
            if ins.kind in ('dsread', 'dswrite'): lg.append((set(ins.vw), set()))
            if ins.kind == 'smem': lg.append((set(), set(ins.sw) or {999}))
            if lg and len(lg) > 15: pass
        self.nops = nops
        return out
    def text(self, **kw):
        o = self.finalize(**kw)
        return '\n'.join(('' if i.is_label else '    ') + i.text for i in o) + '\n'

def interleave(main, fill, ratio=None):
    out = []
    n, m = len(main), len(fill)
    if m == 0: return list(main)
    if n == 0: return list(fill)
    j = 0
    for i, x in enumerate(main):
        while j < m and j * n <= i * m:
            out.append(fill[j]); j += 1
        out.append(x)
    out += fill[j:]
    return out


LAT_SCALE = 1.0
DS_COST = 4
def issue_cost(ins):
    if ins.kind in ('dsread', 'dswrite', 'sync', 'salu', 'smem'): return DS_COST
    if ins.kind in ('vmload', 'vmstore'): return 2 * DS_COST
    if ins.kind == 'mfma': return 8
    if ins.kind == 'trans' or getattr(ins, 'permlane', False): return 8
    if ins.kind == 'valu': return 4
    if ins.kind in ('vmload', 'vmstore'): return 8
    if ins.kind in ('dsread', 'dswrite'): return 4
    if ins.kind == 'nop': return 4 * ins.n
    return 4

def latency(p, c):
    if c.kind == 'sync': return issue_cost(p)
    if p.kind == 'mfma':
        if c.kind == 'mfma' and (p.vw & c.srcC) and c.clist == p.dlist and c.op == p.op and not (p.vw & c.srcAB):
            return p.passes * 4
        if p.vw & (c.vr | c.vw): return int((p.passes * 4 + 20) * LAT_SCALE)
        return 8
    if p.kind == 'dsread' and (p.vw & (c.vr | c.vw)): return int(128 * LAT_SCALE)
    if p.kind == 'dswrite' and c.kind == 'dsread': return int(40 * LAT_SCALE)
    if p.kind == 'vmload' and (p.vw & (c.vr | c.vw)): return 600
    if p.kind == 'trans' and (p.vw & c.vr): return 12
    return issue_cost(p)

def schedule(texts, prio=None, window=400, verbose=False, mfma_first=True, tail_ctx=None):
    ops = [Ins(t) if isinstance(t, str) else t for t in texts]
    n = len(ops)
    preds = [[] for _ in range(n)]
    lastw = {}; readers = {}
    last_ds = None; last_vm = None
    def regs(i, w):
        o = ops[i]
        if w: return [('v', r) for r in o.vw] + [('s', r) for r in o.sw]
        return [('v', r) for r in o.vr] + [('s', r) for r in o.sr]
    for i, o in enumerate(ops):
        ps = set()
        for r in regs(i, False):
            if r in lastw: ps.add(lastw[r])
        for r in regs(i, True):
            if r in lastw: ps.add(lastw[r])
            for j in readers.get(r, []): ps.add(j)
        if o.kind in ('dsread', 'dswrite', 'sync'):
            if last_ds is not None: ps.add(last_ds)
            last_ds = i
        if o.kind in ('vmload', 'vmstore', 'sync'):
            if last_vm is not None: ps.add(last_vm)
            last_vm = i
        if o.kind == 'sync':
            for r in o.after:
                if ('v', r) in lastw: ps.add(lastw[('v', r)])
        assert o.kind not in ('branch', 'label'), o.text
        ps.discard(i)
        preds[i] = sorted(ps)
        for r in regs(i, True):
            lastw[r] = i; readers[r] = []
        for r in regs(i, False):
            readers.setdefault(r, []).append(i)
    succs = [[] for _ in range(n)]
    for i in range(n):
        for p in preds[i]: succs[p].append(i)
    npred = [len(p) for p in preds]
    done_t = [None] * n; done_idx = [None] * n
    ready = [i for i in range(n) if npred[i] == 0]
    t = 0; pipe_free = 0; idx = 0
    order = []; stall = 0
    if prio is None: prio = list(range(n))
    while len(order) < n:
        lo = min(ready, key=lambda i: prio[i])
        cands = []
        for i in ready:
            if prio[i] > prio[lo] + window: continue
            rt = 0; ok_idx = True; short = 0
            for p in preds[i]:
                rt = max(rt, done_t[p] + latency(ops[p], ops[i]))
                g = required_gap(ops[p], ops[i])
                short = max(short, g - (idx - done_idx[p] - 1))
            if ops[i].kind == 'mfma': rt = max(rt, pipe_free)
            rt = max(rt, t + 4 * max(short, 0))
            cands.append((rt, i))
        now = [(i) for rt, i in cands if rt <= t]
        if now:
            mf = [i for i in now if ops[i].kind == 'mfma']
            if mf and mfma_first: pick = min(mf, key=lambda i: prio[i])
            else: pick = min(now, key=lambda i: prio[i])
        else:
            rt, pick = min(cands, key=lambda x: (x[0], prio[x[1]]))
            stall += rt - t
            idx += (rt - t + 3) // 4 if False else 0
            t = rt
        o = ops[pick]
        done_t[pick] = t; done_idx[pick] = idx
        if o.kind == 'mfma': pipe_free = t + o.passes * 4
        t += issue_cost(o); idx += 1
        order.append(pick); ready.remove(pick)
        for s in succs[pick]:
            npred[s] -= 1
            if npred[s] == 0: ready.append(s)
    if verbose: print(f'schedule: {n} ops, est {t} cycles, stall {stall}')
    return [ops[i].text for i in order]


import subprocess, os, tempfile
PROMO = ('v_exp_f32', 'v_rcp_f32', 'v_mov_b32', 'v_add_u32', 'v_xor_b32', 'v_and_b32', 'v_lshlrev_b32', 'v_lshrrev_b32', 'v_mul_f32',
         'v_max_u32', 'v_subrev_u32', 'v_max_f32', 'v_sub_f32', 'v_min_f32', 'v_fmac_f32', 'v_or_b32', 'v_cndmask_b32', 'v_add_f32',
         'v_permlane16_swap_b32', 'v_permlane32_swap_b32', 'v_mul_u32_u24')
def ins_sizes(full):
    d = tempfile.mkdtemp()
    s = os.path.join(d, 'a.s'); o = os.path.join(d, 'a.o')
    open(s, 'w').write(full)
    r = subprocess.run(['clang', '-x', 'assembler', '-target', 'amdgcn-amd-amdhsa', '-mcpu=gfx950', '-c', s, '-o', o], capture_output=True, text=True)
    assert r.returncode == 0, r.stderr
    r = subprocess.run(['llvm-objdump', '-d', o], capture_output=True, text=True)
    out = []
    for l in r.stdout.split('\n'):
        m = re.search(r'// ([0-9A-F]{12}): ([0-9A-F ]+)$', l)
        if m: out.append((int(m.group(1), 16), 4 * len(m.group(2).split()), l.strip().split()[0]))
    return out
def align_pass(full, nopcost=6.0, verbose=True):
    lines = full.split('\n')
    idx = []
    intext = False
    for k, l in enumerate(lines):
        s = l.split(';')[0].strip()
        if s == '.text': intext = True
        if s.startswith('.section'): intext = False
        if intext and s and not s.startswith('.') and not s.endswith(':'): idx.append(k)
    sz = ins_sizes(full)
    sz = sz[:len(idx)]
    assert len(sz) == len(idx), (len(sz), len(idx))
    n = len(idx)
    INF = 1e18
    dp = [(0.0, None), (INF, None)]
    before = 0
    for j in range(n):
        op = lines[idx[j]].split()[0]
        assert sz[j][2].replace('_e32', '').replace('_e64', '').startswith(op.replace('_e64','').replace('_e32','')[:12]), (sz[j], op)
        size = sz[j][1]
        if size == 8 and sz[j][0] % 8: before += 1
        opts = [(size, 0, 0.0)]
        if size == 4 and op in PROMO: opts.append((8, 1, 0.02))
        nd = [(INF, None), (INF, None)]
        for par in (0, 1):
            c0, ch = dp[par]
            if c0 >= INF: continue
            for pre in (0, 1):
                p = par ^ pre
                if pre and not (par == 1): continue
                for s_, flag, ec in opts:
                    c = c0 + ec + (nopcost if pre else 0) + (1.0 if (s_ >= 8 and p == 1) else 0)
                    np_ = (p + s_ // 4) & 1
                    if c < nd[np_][0]: nd[np_] = (c, (ch, j, flag, pre))
        dp = nd
    best = min(dp, key=lambda x: x[0])
    ch = best[1]; npro = nn = 0
    while ch is not None:
        ch, j, flag, pre = ch
        k = idx[j]
        if flag:
            parts = lines[k].split(None, 1); ind = lines[k][:len(lines[k]) - len(lines[k].lstrip())]
            lines[k] = ind + parts[0] + '_e64 ' + parts[1]; npro += 1
        if pre: lines[k] = '    s_nop 0\n' + lines[k]; nn += 1
    if verbose: print(f'align: misaligned before {before}, cost after {best[0]:.1f}, promoted {npro}, nops {nn}')
    return '\n'.join(lines)
```

```python
import sys, math, struct, json, os
from asmlib import *
import asmlib
from valloc import *
from gen1 import HEADER, KNAME, f32bits

M32 = 'v_mfma_f32_32x32x16_bf16'; M16 = 'v_mfma_f32_16x16x32_bf16'
M32h = 'v_mfma_f32_32x32x8_bf16'; M16h = 'v_mfma_f32_16x16x16_bf16'

def gen(opts):
    A = Asm()
    vEA = [1, 2, 3, 4]
    vKT, vQT, vVR, vWb = 5, 6, 7, 8
    vOW, vOW2, vOR, vOffO, vOffOT, vPW, vPWT, vPR, vChk = 9, 10, 11, 12, 13, 14, 15, 16, 17
    PT = PR(18, 2); ONES = PR(20, 4); VT = PR(24, 2)
    vWa = 26; vHf = 27; vWq = 28
    FREE = list(range(29, 256))
    vI, vT0, vT1, vT2, vT3, vD0, vD1, vP, vWs, vRs, vRs2, vPf, vTl, vWn, vTA, vTW = range(240, 256)
    vQ = 228
    pWK, pWQ, pWV, pWN = 32, 48, 64, 80
    pET, pTD = 96, 104
    pE, pQ, pK, pV, pR, pO = 4, 6, 8, 10, 12, 14
    SRD_O, SRD_C = 24, 28
    sW, sB, sH, sEB, sSC, sW64, sEoff, s4096, s8192, sJ, sM0, sM1, sM2, sC, sT, sT2, sTB, sP, sH64, sWG, sX, sSc = range(32, 54)
    LDS_W = 0; LDS_E = 32768; EBYTES = 12288
    LDS_T = LDS_E + 4 * EBYTES
    LDS_TE = LDS_T + 12288
    LDS_Z = LDS_TE + 2560
    LDS_S = LDS_Z + 512; SBYTES = 3072
    LDS_QS = LDS_S + 8 * SBYTES
    lds_total = LDS_QS + 8192
    POFF = 2048
    stpol = {0: '', 1: ' nt', 2: ' sc1', 3: ' sc0 sc1', 4: ' sc0 sc1 nt'}[opts.get('stpol', 3)]
    ldpol = {0: '', 1: ' nt'}[opts.get('ldpol', 1)]
    wpol = {0: '', 1: ' nt'}[opts.get('wpol', 0)]
    dup = opts.get('dup', 0)
    c_scale = math.log2(math.e) / math.sqrt(32.0)
    NST = 10
    def stamp_txt(k):
        if not opts.get('stamps'): return []
        return [f's_memtime s[{60+4*k}:{61+4*k}]', f's_memrealtime s[{62+4*k}:{63+4*k}]']
    def stamp(k): A.extend(stamp_txt(k))
    srd = lambda b: f's[{b}:{b+3}]'
    sp = lambda b: f's[{b}:{b+1}]'

    A(f'{KNAME}:')
    stamp(0)
    A('s_load_dwordx8 s[4:11], s[0:1], 0')
    A('s_load_dwordx4 s[12:15], s[0:1], 32')
    A(f's_getpc_b64 s[{SRD_C}:{SRD_C+1}]')
    A('L_pc:')
    A(f'v_lshlrev_b32 v{vT0}, 7, v0')
    A(f's_mov_b32 s{SRD_C+2}, L_safe-L_pc')
    A(f's_mov_b32 s{SRD_C+3}, 0x20000')
    A('s_cmp_ge_u32 s2, 256')
    A('s_cbranch_scc1 L_end')
    A(f'v_readfirstlane_b32 s{sW64}, v0')
    pf = opts.get('pf', 1)
    if pf in (1, 2): A(f'buffer_load_dword v{vPf}, v{vT0}, {srd(SRD_C)}, 0 offen' + (' nt' if pf == 2 else ''))
    A(f'v_bfe_u32 v{vT1}, v0, 4, 2')
    A(f'v_xor_b32 v{vT1}, v{vT1}, v0')
    A(f'v_and_b32 v{vT1}, 7, v{vT1}')
    A(f'v_lshlrev_b32 v{vT1}, 4, v{vT1}')
    A(f'v_and_b32 v{vP}, 0x38, v0')
    A(f'v_lshl_add_u32 v{vP}, v{vP}, 4, v{vT1}')
    A(f's_mul_i32 s{sWG}, s2, {4*12800}')
    A(f's_lshr_b32 s{sB}, s{sW64}, 7')
    A(f's_mul_i32 s{sEoff}, s{sB}, 12800')
    A(f's_add_u32 s{sEoff}, s{sEoff}, s{sWG}')
    A(f's_mul_i32 s{sEB}, s{sB}, {EBYTES}')
    A(f's_add_u32 s{sEB}, s{sEB}, {LDS_E}')
    A(f's_bfe_u32 s{sJ}, s{sW64}, 0x20006')
    A(f's_lshl_b32 s{sM1}, s{sJ}, 11')
    A(f'v_and_b32 v{vT0}, 63, v0')
    A(f'v_lshl_add_u32 v{vWs}, v{vT0}, 4, s{sM1}')
    A(f's_and_b32 s{sT}, s{sW64}, 64')
    A(f's_lshl_b32 s{sT}, s{sT}, 5')
    A(f's_add_u32 s{sT2}, s{sT}, s{sEoff}')
    A(f'v_add_u32 v{vD0}, s{sT2}, v{vP}')
    A(f's_add_u32 s{sM0}, s{sEB}, s{sT}')
    A(f'v_xor_b32 v{vD1}, 64, v{vD0}')
    A(f's_cmp_lt_u32 s{sW64}, 256')
    A(f's_cbranch_scc1 L_lo0')
    def edma(n):
        return [f'global_load_lds_dwordx4 v{vD1 if k & 1 else vD0}, {sp(pE)}' + (f' offset:{1024*k}' if k else '') + ldpol for k in range(n)]
    A(f's_add_u32 m0, s{sM1}, {LDS_W + 2*8192}')
    A('s_waitcnt lgkmcnt(0)')
    stamp(1)
    A(f'global_load_lds_dwordx4 v{vWs}, {sp(pV)}{wpol}')
    A(f'global_load_lds_dwordx4 v{vWs}, {sp(pV)} offset:1024{wpol}')
    A(f's_mov_b32 m0, s{sM1}')
    A('s_nop 0')
    A(f'global_load_lds_dwordx4 v{vWs}, {sp(pQ)}{wpol}')
    A(f'global_load_lds_dwordx4 v{vWs}, {sp(pQ)} offset:1024{wpol}')
    A('s_branch L_join')
    A('L_lo0:')
    A(f's_mov_b32 m0, s{sM0}')
    A(f's_mul_i32 s{sT}, s{sJ}, 12800')
    A(f's_add_u32 s{sT}, s{sT}, s{sWG}')
    A(f's_add_u32 s{sT}, s{sT}, {96*128}')
    A(f'v_lshl_add_u32 v{vTl}, v{vT0}, 4, s{sT}')
    A(f's_mul_i32 s{sM2}, s{sJ}, 528')
    A(f's_add_u32 s{sM2}, s{sM2}, {LDS_TE}')
    A('s_waitcnt lgkmcnt(0)')
    stamp(1)
    A.extend(edma(2))
    A(f's_mov_b32 m0, s{sM2}')
    A(f's_mov_b32 exec_hi, 0')
    A(f'global_load_lds_dwordx4 v{vTl}, {sp(pE)}{ldpol}')
    A(f's_add_u32 m0, s{sM1}, {LDS_W + 8192}')
    A(f's_mov_b32 exec_hi, -1')
    A(f'global_load_lds_dwordx4 v{vWs}, {sp(pK)}{wpol}')
    A(f'global_load_lds_dwordx4 v{vWs}, {sp(pK)} offset:1024{wpol}')
    def wvr():
        return [f'v_and_b32 v{vT1}, 0x7c, v0', f'v_and_b32 v{vT2}, 64, v0', f'v_add_u32 v{vT1}, v{vT1}, v{vT2}',
                f'v_and_b32 v{vT2}, 48, v{vWs}', f'v_lshl_add_u32 v{vRs}, v{vT1}, 5, v{vT2}', f'v_bfe_u32 v{vT1}, v0, 7, 1',
                f'v_lshl_add_u32 v{vRs}, v{vT1}, 6, v{vRs}', f's_add_u32 m0, s{sM1}, {LDS_W + 3*8192}', f'v_add_u32 v{vRs2}, 1024, v{vRs}',
                f'global_load_lds_dwordx4 v{vRs}, {sp(pR)}{wpol}',
                f'global_load_lds_dwordx4 v{vRs2}, {sp(pR)} offset:1024{wpol}']
    def enext(t, d0=None, d1=None):
        d0 = d0 or f'v{vD0}'; d1 = d1 or f'v{vD1}'
        return [f's_add_u32 m0, s{sM0}, {4096*t}', f'v_add_u32 {d0}, 4096, {d0}', f'v_add_u32 {d1}, 4096, {d1}',
                f'global_load_lds_dwordx4 {d0}, {sp(pE)}{ldpol}', f'global_load_lds_dwordx4 {d1}, {sp(pE)} offset:1024{ldpol}']
    A('L_join:')
    stamp(2)
    if pf == 4:
        A(f's_lshl_b32 s{sT}, s{sW64}, 5')
        A(f's_add_u32 s{SRD_C}, s{SRD_C}, s{sT}')
        A(f's_addc_u32 s{SRD_C+1}, s{SRD_C+1}, 0')
        for k in range(16): A(f's_load_dword s{SRD_C+2}, s[{SRD_C}:{SRD_C+1}], {128*k}')
    A(f's_lshr_b32 s{sW}, s{sW64}, 6')
    A(f's_and_b32 s{sH}, s{sW}, 1')
    A(f's_add_u32 s{SRD_O}, s{pO}, s{sEoff}')
    A(f's_addc_u32 s{SRD_O+1}, s{pO+1}, 0')
    A(f's_mov_b32 s{SRD_O+2}, 12800')
    A(f's_mov_b32 s{SRD_O+3}, 0x20000')
    A(f's_mov_b32 s{s4096}, 4096')
    A(f's_mov_b32 s{s8192}, 8192')
    A(f's_mov_b32 s{sC}, 0x{f32bits(c_scale):08x}')
    A(f's_mul_i32 s{sSC}, s{sW}, {SBYTES}')
    A(f's_add_u32 s{sSC}, s{sSC}, {LDS_S}')
    A(f's_add_u32 s{sP}, s{sSC}, {POFF}')
    A(f's_lshl_b32 s{sT}, s{sH}, 10')
    A(f's_lshl_b32 s{sT2}, s{sB}, 8')
    A(f's_add_u32 s{sTB}, s{sT}, s{sT2}')
    A(f's_lshl_b32 s{sX}, s{sTB}, 1')
    A(f's_add_u32 s{sTB}, s{sTB}, {LDS_T}')
    A(f's_add_u32 s{sX}, s{sX}, {LDS_T + 4096}')
    A(f's_lshl_b32 s{sH64}, s{sH}, 6')
    A(f's_lshl_b32 s{sT}, s{sH}, 12')
    A(f's_cmp_lt_u32 s{sW}, 4')
    A(f's_cbranch_scc1 L_j2')
    A(f's_mov_b32 m0, s{sM0}')
    A('s_nop 0')
    A.extend(edma(2))
    A('L_j2:')
    A(f'v_bfe_u32 v{vHf}, v0, 5, 1')
    A(f'v_bfe_u32 v{vT0}, v0, 2, 2')
    A(f'v_lshl_add_u32 v{vT2}, v{vHf}, 3, v{vT0}')
    A(f'v_lshl_add_u32 v{vT2}, v{vT2}, 6, s{sT}')
    A(f'v_and_b32 v{vT1}, 16, v0')
    A(f'v_lshl_add_u32 v{vT2}, v{vT1}, 1, v{vT2}')
    A(f'v_and_b32 v{vT1}, 3, v0')
    A(f'v_lshlrev_b32 v{vT1}, 3, v{vT1}')
    A(f'v_add_u32 v{vWa}, v{vT1}, v{vT2}')
    A(f'v_and_b32 v{vT3}, 1, v0')
    A(f'v_lshlrev_b32 v{vT3}, 4, v{vT3}')
    A(f'v_and_b32 v{vI}, 2, v0')
    A(f'v_lshl_add_u32 v{vT3}, v{vI}, 2, v{vT3}')
    A(f'v_add_u32 v{vWb}, v{vT3}, v{vT2}')
    A(f'v_cmp_gt_u32 vcc, 256, v0')
    A(f'v_cndmask_b32 v{vT1}, v{vT3}, v{vT1}, vcc')
    A(f'v_lshl_add_u32 v{vWn}, v{vT0}, 6, v{vT1}')
    A(f'v_and_b32 v{vT0}, 48, v0')
    A(f'v_lshl_add_u32 v{vWn}, v{vT0}, 5, v{vWn}')
    A(f's_lshl_b32 s{sT}, s{sW}, 12')
    A(f's_lshl_b32 s{sT2}, s{sH}, 12')
    A(f's_add_u32 s{sT2}, s{sT2}, {2*8192}')
    A(f's_lshl_b32 s{sSc}, s{sB}, 5')
    A(f's_and_b32 s{sSc}, s{sSc}, 32')
    A(f's_add_u32 s{sT2}, s{sT2}, s{sSc}')
    A(f's_cmp_lt_u32 s{sW}, 4')
    A(f's_cselect_b32 s{sT}, s{sT}, s{sT2}')
    A(f'v_add_u32 v{vWn}, s{sT}, v{vWn}')
    A(f'v_add_u32 v{vWq}, {LDS_QS}, v{vWa}')
    A(f's_cmp_lt_u32 s{sW}, 2')
    A(f's_cselect_b32 s{sSc}, s{sC}, 1.0')
    A(f'v_bfe_u32 v{vT1}, v0, 2, 2')
    A(f'v_mul_u32_u24 v{vT1}, 528, v{vT1}')
    A(f'v_and_b32 v{vT2}, 3, v0')
    A(f'v_lshl_add_u32 v{vT1}, v{vT2}, 7, v{vT1}')
    A(f's_mov_b32 s{sM2}, {LDS_TE}')
    A(f'v_add3_u32 v{vTA}, v{vT1}, v{vT0}, s{sM2}')
    A(f'v_mov_b32 {VT(0)}, 0')
    A(f'v_mov_b32 {VT(1)}, 0')
    A(f'v_mov_b32 {PT(1)}, 0')
    A(f'v_and_b32 v{vT0}, 63, v0')
    A(f'v_lshl_add_u32 v{vT0}, v{vT0}, 3, s{sM2}')
    A(f'ds_write_b64 v{vT0}, {VT(0,2)} offset:{LDS_Z - LDS_TE}')
    A(f'v_bfe_u32 v{vT0}, v0, 1, 3')
    A(f'v_xor_b32 v{vT0}, v{vT0}, v{vHf}')
    A(f'v_lshl_add_u32 v{vT0}, v{vT0}, 4, s{sEB}')
    A(f'v_and_b32 v{vI}, 31, v0')
    A(f'v_lshl_add_u32 v{vEA[0]}, v{vI}, 7, v{vT0}')
    for s in range(1, 4): A(f'v_xor_b32 v{vEA[s]}, {32*s}, v{vEA[0]}')

    def addr_groups(T):
        G = []
        g = []; t = T(4); a, b, c, i = t(0), t(1), t(2), t(3)
        g += [f'v_bfe_u32 {a}, v0, 3, 1', f'v_and_b32 {b}, 1, v0', f'v_lshl_add_u32 {b}, {a}, 1, {b}',
              f'v_lshl_add_u32 {a}, v{vHf}, 4, s{sTB}', f'v_lshl_add_u32 v{vQT}, {b}, 6, {a}', f'v_add_u32 v{vKT}, 2048, v{vQT}',
              f'v_lshl_add_u32 {a}, v{vHf}, 4, s{sP}', f'v_lshl_add_u32 v{vPR}, {b}, 8, {a}',
              f'v_lshrrev_b32 {b}, 2, v0', f'v_xor_b32 {b}, {b}, v0', f'v_and_b32 {c}, 4, {b}',
              f'v_cmp_eq_u32 vcc, 0, {c}', f'v_mov_b32 {a}, 0x3f803f80', f'v_cndmask_b32 {ONES(0)}, 0, {a}, vcc',
              f'v_and_or_b32 {b}, v0, 2, {c}', f'v_cmp_eq_u32 vcc, 0, {b}', f'v_mov_b32 {b}, {LDS_Z}',
              f'v_cndmask_b32 v{vQT}, {b}, v{vQT}, vcc', f'v_cndmask_b32 v{vKT}, {b}, v{vKT}, vcc', f'v_cndmask_b32 v{vPR}, {b}, v{vPR}, vcc']
        g += [f'v_mov_b32 {ONES(k)}, {ONES(0)}' for k in (1, 2, 3)]
        g += [f'v_and_b32 {i}, 31, v0', f'v_lshl_add_u32 {a}, {i}, 4, s{sX}', f'v_lshl_add_u32 v{vVR}, v{vHf}, 3, {a}', f'v_mov_b32 v{vChk}, 0']
        G.append(g)
        g = []; t = T(4); a, b, c, i = t(0), t(1), t(2), t(3)
        g += [f'v_and_b32 {a}, 0x13, v0', f'v_and_b32 {b}, 4, v0', f'v_lshl_add_u32 {a}, {b}, 1, {a}', f'v_bfe_u32 {b}, v0, 3, 1',
              f'v_lshl_add_u32 {a}, {b}, 2, {a}', f'v_lshlrev_b32 {a}, 1, {a}',
              f'v_lshl_add_u32 {c}, v{vHf}, 8, {a}', f'v_add_u32 {c}, s{sH64}, {c}',
              f'v_add_u32 v{vOffOT}, {96*128}, {c}',
              f'v_lshl_add_u32 {c}, v{vHf}, 9, s{sP}', f'v_add_u32 v{vPW}, {c}, {a}',
              f'v_and_b32 {a}, 3, v0', f'v_lshl_add_u32 {a}, {b}, 3, {a}', f'v_lshlrev_b32 {a}, 1, {a}', f'v_add_u32 {a}, 192, {a}',
              f'v_and_b32 {b}, 0x14, v0', f'v_cmp_eq_u32 vcc, 0, {b}', f'v_mov_b32 {b}, 240', f'v_cndmask_b32 {a}, {b}, {a}, vcc',
              f'v_add_u32 v{vPWT}, {c}, {a}']
        G.append(g)
        g = []; t = T(4); a, b, c, i = t(0), t(1), t(2), t(3)
        g += [f'v_bfe_u32 {a}, v0, 1, 2', f'v_xor_b32 {a}, {a}, v{vHf}', f'v_lshl_add_u32 {a}, {a}, 4, s{sSC}', f'v_and_b32 {i}, 31, v0',
              f'v_lshl_add_u32 v{vOW}, {i}, 6, {a}', f'v_xor_b32 v{vOW2}, 32, v{vOW}',
              f'v_lshrrev_b32 {a}, 3, v0', f'v_xor_b32 {a}, {a}, v0', f'v_and_b32 {a}, 3, {a}', f'v_lshl_add_u32 {a}, {a}, 4, s{sSC}',
              f'v_bfe_u32 {b}, v0, 2, 4', f'v_lshl_add_u32 v{vOR}, {b}, 6, {a}',
              f'v_and_b32 {a}, 3, v0', f'v_lshl_add_u32 {a}, {a}, 4, s{sH64}', f'v_lshl_add_u32 v{vOffO}, {b}, 7, {a}']
        G.append(g)
        return G
    PG = addr_groups(lambda n: PR(vI, 4))
    def wtr(base, mat, va):
        return [f'ds_read_b64_tr_b16 v[{base+4*s+2*z}:{base+4*s+2*z+1}], v{va} offset:{LDS_W + mat*8192 + s*1024 + z*256}' for s in range(4) for z in range(2)]
    A(f's_cmp_ge_u32 s{sW64}, 256')
    A(f's_cbranch_scc1 L_hi1')

    def build(mode):
        safe = mode == 'safe'
        VRs = VRegs(); N = VRs.new
        X = []
        def chain(op, D, nd, pairs, first=True):
            for k, (a, b) in enumerate(pairs):
                cc = '0' if (k == 0 and first) else D(0, nd)
                X.append(f'{op} {D(0,nd)}, {a}, {b}, {cc}')
        def cvt(dst, do, src, so, n):
            for x in range(n): X.append(f'v_cvt_pk_bf16_f32 {dst(do+x)}, {src(so+2*x)}, {src(so+2*x+1)}')
        def wread(mat, inter=None):
            W = N('W', 16)
            va = vWq if mat == 4 else vWa if mat < 2 else vWb
            for s in range(4):
                for z in range(2):
                    X.append(f'ds_read_b64_tr_b16 {W(4*s+2*z,2)}, v{va} offset:{LDS_W + (mat&3)*8192 + s*1024 + z*256}')
                if inter: X.append(inter[s])
            return W
        def eread(t):
            E = N('E', 16)
            for s in range(4): X.append(f'ds_read_b128 {E(4*s,4)}, v{vEA[s]} offset:{4096*t}')
            return E
        def tread(va):
            R = N('TT', 8)
            for u in range(2): X.append(f'ds_read_b128 {R(4*u,4)}, v{va} offset:{32*u}')
            return R
        def vtread():
            T = N('VTT', 2)
            X.append(f'ds_read_b64 {T(0,2)}, v{vVR}')
            X.append(f'v_cvt_pk_bf16_f32 {VT(0)}, {T(0)}, {T(1)}')
        def rtread():
            T = N('RT', 2)
            X.append(f'ds_read_b64 {T(0,2)}, v{vVR} offset:4096')
            return T
        def projT(W, E, tobf=True, scale=False):
            T = N('T', 16)
            chain(M32, T, 16, [(W(4*s,4), E(4*s,4)) for s in range(4)])
            if not tobf: return T
            if scale:
                for r in range(16): X.append(f'v_mul_f32 {T(r)}, s{sC}, {T(r)}')
            R = N('R', 8); cvt(R, 0, T, 0, 8); return R
        def projV(E, W):
            T = N('T', 16)
            chain(M32, T, 16, [(E(4*s,4), W(4*s,4)) for s in range(4)])
            R = N('R', 8); cvt(R, 0, T, 0, 8); return R
        K = {}; V = {}; Q = {}; ctx = {}; l = {}; started = set()
        def smm(t, g):
            if g < 3:
                S = N('S', 16); chain(M32, S, 16, [(K[g](4*u,4), Q[t](4*u,4)) for u in range(2)])
            else:
                S = N('SG', 4); chain(M16, S, 4, [(K[3](4*u,4), Q[t](4*u,4)) for u in range(2)])
            return S
        def pv(t, g, S):
            if t not in ctx: ctx[t] = N('C', 16); l[t] = N('L', 4)
            c = ctx[t]; ll = l[t]
            if g == 3:
                X.append(f'v_exp_f32 {S(0)}, {S(0)}'); X.append(f'v_exp_f32 {S(1)}, {S(1)}')
                X.append(f'v_cvt_pk_bf16_f32 {PT(0)}, {S(0)}, {S(1)}')
                f = t not in started; started.add(t)
                X.append(f'{M32h} {c(0,16)}, {VT(0,2)}, {PT(0,2)}, {"0" if f else c(0,16)}')
                X.append(f'{M16h} {ll(0,4)}, {ONES(0,2)}, {PT(0,2)}, {"0" if f else ll(0,4)}')
                return
            for u in range(2):
                for r in range(8): X.append(f'v_exp_f32 {S(8*u+r)}, {S(8*u+r)}')
                cvt(S, 8*u, S, 8*u, 4)
                f = t not in started; started.add(t)
                X.append(f'{M16} {ll(0,4)}, {ONES(0,4)}, {S(8*u,4)}, {"0" if f else ll(0,4)}')
                X.append(f'{M32} {c(0,16)}, {V[g](4*u,4)}, {S(8*u,4)}, {"0" if f else c(0,16)}')
        def epi(t, RES):
            c = ctx[t]; ll = l[t]
            X.append(f'v_rcp_f32 {ll(1)}, {ll(0)}')
            if not safe: X.append(f'v_max3_u32 v{vChk}, {ll(0)}, {ll(1)}, v{vChk}')
            for r in range(16): X.append(f'v_fmac_f32 {RES(r)}, {c(r)}, {ll(1)}')
            cvt(RES, 0, RES, 0, 8)
            for r in range(8): X.append(f'v_pk_max_i16 {RES(r)}, {RES(r)}, 0')
            X.append(f'ds_write_b128 v{vOW}, {RES(0,4)}')
            X.append(f'ds_write_b128 v{vOW2}, {RES(4,4)}')
            for y in range(2): X.append(f'ds_read_b128 {RES(8+4*y,4)}, v{vOR} offset:{1024*y}')
            so = ['0', f's{s4096}', f's{s8192}'][t]
            for y in range(2):
                X.append(f'buffer_store_dwordx4 {RES(8+4*y,4)}, v{vOffO}, {srd(SRD_O)}, {so} offen offset:{2048*y}{stpol}')
        def fs_mm(SF, o, g):
            for u in range(2):
                X.append(f'{M16} {SF(o,4)}, {Q[3](4*u,4)}, {K[g](4*u,4)}, {"0" if u == 0 else SF(o,4)}')
        def fs_exp(SF, b, g):
            X.append(f'v_exp_f32 {SF(b)}, {SF(b)}'); X.append(f'v_exp_f32 {SF(b+1)}, {SF(b+1)}')
            X.append(f'v_cvt_pk_bf16_f32 {SF(b)}, {SF(b)}, {SF(b+1)}')
            va, off = (vPW, 64*g) if g < 3 else (vPWT, 0)
            X.append(f'ds_write_b16 v{va}, {SF(b)} offset:{off}')
            X.append(f'ds_write_b16_d16_hi v{va}, {SF(b)} offset:{off+256}')
        def fs(g):
            SF = N('SF', 4); fs_mm(SF, 0, g); fs_exp(SF, 0, g)
        def ftail_safe():
            SF = N('SF', 16)
            for g in range(4): fs_mm(SF, 4*g, g)
            M = N('M', 2)
            X.append(f'v_and_b32 {M(0)}, 0x16, v0')
            X.append(f'v_cmp_eq_u32 vcc, 0, {M(0)}')
            for r in range(2):
                m = M(r)
                X.append(f'v_cndmask_b32 {m}, {SF(r)}, {SF(12+r)}, vcc')
                X.append(f'v_max3_f32 {m}, {m}, {SF(r)}, {SF(4+r)}')
                X.append(f'v_max_f32 {m}, {m}, {SF(8+r)}')
                for sh in (1, 2, 4, 8):
                    X.append(f'v_max_f32_dpp {m}, {m}, {m} row_ror:{sh} row_mask:0xf bank_mask:0xf')
                X.append(f'v_mov_b32 {SF(2)}, {m}')
                X.append(f'v_permlane16_swap_b32 {m}, {SF(2)}')
                X.append(f'v_max_f32 {m}, {m}, {SF(2)}')
                for g in range(4): X.append(f'v_sub_f32 {SF(4*g+r)}, {SF(4*g+r)}, {m}')
                X.append(f'v_min_f32 {SF(12+r)}, 0, {SF(12+r)}')
            for g in range(4): fs_exp(SF, 4*g, g)
        def ftail_read():
            PS = N('PS', 24); PST = N('PST', 2)
            X.append(f'ds_read_b64 {PST(0,2)}, v{vPR} offset:192')
            for ks in range(6): X.append(f'ds_read_b128 {PS(4*ks,4)}, v{vPR} offset:{32*ks}')
            return PS, PST
        def ftail_pv(PS, PST, RT):
            ONA = N('ONA', 8); CT = N('CT', 4); LT = N('LT', 4)
            for k in range(5): X.append(f'v_mov_b32 {ONA(k)}, 0x3f803f80')
            X.append(f'v_mov_b32 {ONA(5)}, 0')
            X.append(f'{M16h} {CT(0,4)}, {PST(0,2)}, {VT(0,2)}, 0')
            X.append(f'{M16h} {LT(0,4)}, {PST(0,2)}, {ONA(4,2)}, 0')
            for ks in range(6):
                X.append(f'{M16} {CT(0,4)}, {PS(4*ks,4)}, {V[ks>>1](4*(ks&1),4)}, {CT(0,4)}')
                X.append(f'{M16} {LT(0,4)}, {PS(4*ks,4)}, {ONA(0,4)}, {LT(0,4)}')
            for r in range(2):
                X.append(f'v_rcp_f32 {LT(2+r)}, {LT(r)}')
                if not safe: X.append(f'v_max3_u32 v{vChk}, {LT(r)}, {LT(2+r)}, v{vChk}')
                X.append(f'v_fma_f32 {CT(r)}, {CT(r)}, {LT(2+r)}, {RT(r)}')
            X.append(f'v_cvt_pk_bf16_f32 {CT(0)}, {CT(0)}, {CT(1)}')
            X.append(f'v_pk_max_i16 {CT(0)}, {CT(0)}, 0')
            X.append(f'buffer_store_short {CT(0)}, v{vOffOT}, {srd(SRD_O)}, 0 offen{stpol}')
            X.append(f'buffer_store_short_d16_hi {CT(0)}, v{vOffOT}, {srd(SRD_O)}, 0 offen offset:128{stpol}')
        def sync(n, after=None, st=None):
            aft = f' ;;after {after}' if after else ''
            if n is not None: X.append(f's_waitcnt vmcnt({n})' + aft)
            X.append('s_barrier' + aft)
            if st is not None and opts.get('stamps', 0) > 1: X.extend(stamp_txt(st))

        if safe:
            WK = wread(1); WV = wread(2)
            for t in range(3):
                E = eread(t)
                K[t] = projT(WK, E)
                V[t] = projV(E, WV)
            K[3] = tread(vKT); vtread()
            WQ = wread(4); WR = wread(3)
            for t in range(3):
                E = eread(t)
                Q[t] = projT(WQ, E)
                RES = projT(WR, E, False)
                Ss = [smm(t, g) for g in range(4)]
                M = N('M', 2)
                regs = [Ss[g](r) for g in range(3) for r in range(16)] + [Ss[3](0), Ss[3](1)]
                X.append(f'v_max_f32 {M(0)}, {regs[0]}, {regs[1]}')
                for k in range(2, 50, 2): X.append(f'v_max3_f32 {M(0)}, {regs[k]}, {regs[k+1]}, {M(0)}')
                X.append(f'v_mov_b32 {M(1)}, {M(0)}')
                X.append(f'v_permlane32_swap_b32 {M(0)}, {M(1)}')
                X.append(f'v_max_f32 {M(0)}, {M(0)}, {M(1)}')
                for r in regs: X.append(f'v_sub_f32 {r}, {r}, {M(0)}')
                for g in (3, 0, 1, 2): pv(t, g, Ss[g])
                epi(t, RES)
            Q[3] = tread(vQT); RT = rtread()
            ftail_safe(); PS, PST = ftail_read(); ftail_pv(PS, PST, RT)
        else:
            lo = mode == 'lo'
            DD = VRs.pin('DD', vD0, 2); TA = VRs.pin('TA', vWn, 3)
            pos = {'BT': (opts.get('bt', 4), None), 'B2': (opts.get('b2lo', 6), opts.get('b2hi', 3)),
                   'B3': (opts.get('b3lo', 9), opts.get('b3hi', 6)), 'B4': (opts.get('b4lo', 11), opts.get('b4hi', 9))}
            e2m = opts.get('e2lo', 4) if lo else opts.get('e2hi', 1)
            state = {'e2': False}
            def mark(p, after):
                for nm in ('BT', 'B2', 'B3', 'B4'):
                    if pos[nm][0 if lo else 1] != p: continue
                    aft = f' ;;after {after}' if after else ''
                    w = None
                    if nm == 'BT': w = 'lgkmcnt(0)'
                    if nm == 'B2' and lo: w = f'vmcnt({2 if state["e2"] else 0})'
                    if nm == 'B3' and not lo: w = f'vmcnt({2 if state["e2"] else 0}) lgkmcnt(0)'
                    if nm == 'B4': assert state['e2']; w = 'vmcnt(0)' + ('' if lo else ' lgkmcnt(0)')
                    if w: X.append(f's_waitcnt {w}{aft}')
                    X.append('s_barrier' + aft)
                    if nm == 'BT': tails()
                    if nm == 'B2' and not lo: rtail()
                if p == e2m:
                    X.extend(enext(2, DD(0), DD(1))); state['e2'] = True
            W = {}
            def tails():
                K[3] = tread(vKT); Q[3] = tread(vQT); vtread()
                if lo: W['Q'] = wread(4)
            def rtail():
                WN = N('WN', 8); ET = N('ET', 8); D = N('TD', 4)
                for s2 in range(2):
                    X.append(f'ds_read_b128 {ET(4*s2,4)}, {TA(1)} offset:{64*s2}')
                    for z in range(2): X.append(f'ds_read_b64_tr_b16 {WN(4*s2+2*z,2)}, {TA(0)} offset:{8192 + s2*2048 + z*256}')
                for s2 in range(2): X.append(f'{M16} {D(0,4)}, {ET(4*s2,4)}, {WN(4*s2,4)}, {"0" if s2 == 0 else D(0,4)}')
                X.append(f'ds_write_b128 {TA(2)}, {D(0,4)} offset:4096')
            if lo:
                E0 = N('E', 16)
                WK = wread(1, [f'ds_read_b128 {E0(4*s,4)}, v{vEA[s]}' for s in range(4)])
                if opts.get('e1lo', 0): X.extend(enext(1, DD(0), DD(1)))
                WQ = wread(0); WV = wread(2)
                WN = N('WN', 16); ET = N('ET', 8); D = N('TD', 8)
                for s2 in range(2): X.append(f'ds_read_b128 {ET(4*s2,4)}, {TA(1)} offset:{64*s2}')
                for s2 in range(2):
                    for u in range(2):
                        for z in range(2):
                            X.append(f'ds_read_b64_tr_b16 {WN(8*u+4*s2+2*z,2)}, {TA(0)} offset:{s2*2048 + z*256 + u*32}')
                K[0] = projT(WK, E0); Q[0] = projT(WQ, E0, scale=True); V[0] = projV(E0, WV)
                S = smm(0, 0)
                for s2 in range(2):
                    for u in range(2):
                        X.append(f'{M16} {D(4*u,4)}, {WN(8*u+4*s2,4)}, {ET(4*s2,4)}, {"0" if s2 == 0 else D(4*u,4)}')
                for u in range(2):
                    for r in range(4): X.append(f'v_mul_f32 {D(4*u+r)}, s{sSc}, {D(4*u+r)}')
                    X.append(f'v_cvt_pk_bf16_f32 {D(4*u)}, {D(4*u)}, {D(4*u+1)}')
                    X.append(f'v_cvt_pk_bf16_f32 {D(4*u+1)}, {D(4*u+2)}, {D(4*u+3)}')
                    X.append(f'ds_write_b64 {TA(2)}, {D(4*u,2)} offset:{32*u}')
                mark(3, S(0))
            else:
                WK = VRs.pin('WK', pWK, 16); WV = VRs.pin('WV', pWV, 16)
                E0 = eread(0)
                W['Q'] = wread(4)
                tails()
                mark(0, None)
                K[0] = projT(WK, E0)
                mark(1, K[0](0))
                Q[0] = projT(W['Q'], E0)
                mark(2, Q[0](0))
                S = smm(0, 0)
                V[0] = projV(E0, WV)
                mark(3, V[0](0))
            pv(0, 0, S)
            mark(4, S(8))
            S2 = smm(0, 3)
            fs(3)
            mark(5, S2(0))
            fs(0)
            pv(0, 3, S2)
            mark(6, PT(0))
            WQ = W['Q']
            E1 = eread(1)
            Q[1] = projT(WQ, E1)
            mark(7, Q[1](0))
            K[1] = projT(WK, E1)
            S2 = smm(1, 3)
            S = smm(1, 0)
            mark(8, K[1](0))
            V[1] = projV(E1, WV)
            pv(1, 3, S2)
            mark(9, V[1](0))
            pv(1, 0, S)
            mark(10, S(8))
            S = smm(0, 1)
            fs(1)
            mark(11, S(0)); E2 = eread(2)
            pv(0, 1, S)
            S = smm(1, 1)
            K[2] = projT(WK, E2)
            WR = wread(3)
            pv(1, 1, S)
            S = smm(0, 2)
            V[2] = projV(E2, WV)
            E0 = eread(0)
            fs(2)
            pv(0, 2, S)
            S = smm(1, 2)
            RES = projT(WR, E0, False)
            E1 = eread(1)
            Q[2] = projT(WQ, E2)
            epi(0, RES)
            pv(1, 2, S)
            S2 = smm(2, 3)
            S = smm(2, 0)
            RES = projT(WR, E1, False)
            PS, PST = ftail_read(); RT = rtread()
            pv(2, 3, S2)
            epi(1, RES)
            pv(2, 0, S)
            S = smm(2, 1)
            ftail_pv(PS, PST, RT)
            E2 = eread(2)
            pv(2, 1, S)
            S = smm(2, 2)
            RES = projT(WR, E2, False)
            pv(2, 2, S)
            epi(2, RES)
        prog, base = allocate(X, VRs, FREE, verbose=True)
        return prog

    asmlib.LAT_SCALE = opts.get('lat', 100) / 100.0
    asmlib.DS_COST = opts.get('dsc', 4)
    def main_stream(mode):
        ext = opts.get('ext_' + mode)
        if ext: return [l for l in open(ext).read().split('\n') if l.strip()]
        fast = schedule(build(mode), verbose=True, window=opts.get('window', 150))
        pr = opts.get('prio', 0)
        if pr:
            if pr == 1 and mode == 'hi': fast = ['s_setprio 1'] + fast
            if pr >= 2:
                n = len(fast)
                fr = {2: (0.5, 0.8, 0.93), 3: (0.4, 0.65, 0.85), 4: (0.3, 0.6, 0.9)}[pr]
                ins = {0: 3}
                for k, f in enumerate(fr): ins[int(n * f)] = 2 - k
                nf = []
                for i, t in enumerate(fast):
                    if i in ins: nf.append(f's_setprio {ins[i]}')
                    nf.append(t)
                fast = nf
        if opts.get('dump'): open(f'{opts["dump"]}_{mode}.txt', 'w').write('\n'.join(fast) + '\n')
        return fast

    for g in PG: A.extend(g)
    A(f's_lshl_b32 s{sT}, s{sW}, 10')
    A(f's_add_u32 s{sT}, s{sT}, {LDS_T}')
    A(f'v_and_b32 v{vT0}, 15, v0')
    A(f'v_and_b32 v{vT1}, 16, v0')
    A(f'v_lshl_add_u32 v{vT1}, v{vT0}, 6, v{vT1}')
    A(f'v_lshl_add_u32 v{vT1}, v{vHf}, 3, v{vT1}')
    A(f'v_add_u32 v{vTW}, s{sT}, v{vT1}')
    stamp(3)
    if not opts.get('e1lo', 0): A.extend(enext(1))
    A.extend(wvr())
    stamp(4)
    A(f's_waitcnt vmcnt({2 if opts.get("e1lo", 0) else 4}) lgkmcnt(0)')
    A('s_barrier')
    stamp(5)
    A('L_lo:')
    A.extend(main_stream('lo'))
    A('L_loend:')
    A('s_branch L_fin')
    A('L_hi1:')
    for g in PG: A.extend(g)
    A(f's_lshl_b32 s{sT}, s{sH}, 11')
    A(f's_lshl_b32 s{sT2}, s{sB}, 8')
    A(f's_add_u32 s{sT}, s{sT}, s{sT2}')
    A(f's_add_u32 s{sT}, s{sT}, {LDS_T + 4096 - 512}')
    A(f'v_and_b32 v{vT0}, 15, v0')
    A(f'v_lshl_add_u32 v{vT0}, v{vT0}, 4, s{sT}')
    A(f'v_and_b32 v{vT1}, 48, v0')
    A(f'v_lshl_add_u32 v{vTW}, v{vT1}, 5, v{vT0}')
    A(f'v_add_u32 v{vRs}, {LDS_QS}, v{vWs}')
    stamp(3)
    A(f's_waitcnt vmcnt(4)')
    for k in range(2): A(f'ds_read_b128 v[{vQ+4*k}:{vQ+4*k+3}], v{vWs} offset:{1024*k}') if False else None
    A(f's_waitcnt vmcnt(2) lgkmcnt(0)')
    for k in range(2): A(f'ds_read_b128 v[{vQ+4*k}:{vQ+4*k+3}], v{vWs} offset:{1024*k}')
    A('s_barrier')
    stamp(4)
    for s2 in range(2):
        A(f'ds_read_b128 v[{pET+4*s2}:{pET+4*s2+3}], v{vTA} offset:{64*s2}')
        for z in range(2): A(f'ds_read_b64_tr_b16 v[{pWN+4*s2+2*z}:{pWN+4*s2+2*z+1}], v{vWn} offset:{s2*2048 + z*256}')
    A.extend(enext(1))
    for k in range(8):
        A(f'v_lshlrev_b32 v{vQ+8}, 16, v{vQ+k}')
        A(f'v_and_b32 v{vQ+9}, 0xffff0000, v{vQ+k}')
        A(f'v_mul_f32 v{vQ+8}, s{sC}, v{vQ+8}')
        A(f'v_mul_f32 v{vQ+9}, s{sC}, v{vQ+9}')
        A(f'v_cvt_pk_bf16_f32 v{vQ+k}, v{vQ+8}, v{vQ+9}')
        if k & 3 == 3: A(f'ds_write_b128 v{vRs}, v[{vQ+k-3}:{vQ+k}] offset:{(k>>2)*1024}')
        if k == 3:
            for s2 in range(2): A(f'{M16} v[{pTD}:{pTD+3}], v[{pET+4*s2}:{pET+4*s2+3}], v[{pWN+4*s2}:{pWN+4*s2+3}], {"0" if s2 == 0 else f"v[{pTD}:{pTD+3}]"}')
    A(f'ds_write_b128 v{vTW}, v[{pTD}:{pTD+3}]')
    A.extend(wtr(pWK, 1, vWa))
    A.extend(wtr(pWV, 2, vWb))
    A(f's_waitcnt vmcnt(2) lgkmcnt(0)')
    A('s_barrier')
    stamp(5)
    A('L_hi:')
    A.extend(main_stream('hi'))
    A('L_hiend:')
    A('L_fin:')
    stamp(8)
    vT0, vT1 = 30, 31
    if opts.get('stamps'):
        A('s_waitcnt vmcnt(0)')
        stamp(9)
        A('s_load_dwordx2 s[56:57], s[0:1], 56')
        A('s_waitcnt lgkmcnt(0)')
        A('s_mov_b32 s58, 0x1000000')
        A('s_mov_b32 s59, 0x20000')
        A(f's_lshl_b32 s3, s2, 3')
        A(f's_add_u32 s3, s3, s{sW}')
        A(f's_lshl_b32 s3, s3, 7')
        A(f'v_mov_b32 v{vT0}, s3')
        ks = [k for k in range(NST) if opts['stamps'] > 1 or k not in (6, 7)]
        for j, k in enumerate(ks):
            A(f'v_mov_b32 v{vT1}, s{60+4*k}')
            A(f'buffer_store_dword v{vT1}, v{vT0}, s[56:59], 0 offen offset:{4*j}')
            A(f'v_mov_b32 v{vT1}, s{62+4*k}')
            A(f'buffer_store_dword v{vT1}, v{vT0}, s[56:59], 0 offen offset:{64+4*j}')
    A(f's_mov_b32 s{sT}, 0x{(127+40)<<23:08x}')
    A('s_nop 4')
    A(f'v_cmp_le_u32 vcc, s{sT}, v{vChk}')
    if opts.get('force_safe'): A('s_mov_b64 vcc, -1')
    A('s_nop 4')
    A('s_cbranch_vccnz L_safe')
    A('L_end:')
    A('s_endpgm')
    A('L_safe:')
    A('s_waitcnt vmcnt(0) lgkmcnt(0)')
    A('s_nop 15')
    A('s_nop 15')
    A.extend(build('safe'))
    A('s_endpgm')
    txt = A.text()
    print('nops inserted:', A.nops, file=sys.stderr)
    out = HEADER + f'; @launch grid=(256,1,1) block=(512,1,1) lds={lds_total}\n'
    out += '.amdgcn_target "amdgcn-amd-amdhsa--gfx950"\n.text\n'
    out += f'.globl {KNAME}\n.p2align 8\n.type {KNAME},@function\n'
    out += txt
    out += f""".section .rodata,"a"
.p2align 6
.amdhsa_kernel {KNAME}
  .amdhsa_next_free_vgpr 256
  .amdhsa_next_free_sgpr 102
  .amdhsa_accum_offset 256
  .amdhsa_group_segment_fixed_size 0
  .amdhsa_kernarg_size 64
  .amdhsa_user_sgpr_count 2
  .amdhsa_user_sgpr_kernarg_segment_ptr 1
  .amdhsa_system_sgpr_workgroup_id_x 1
.end_amdhsa_kernel
"""
    if opts.get('al', 1): out = align_pass(out)
    return out

if __name__ == '__main__':
    opts = {}
    outp = sys.argv[1]
    for a in sys.argv[2:]:
        k, v = a.split('=')
        opts[k] = int(v) if v.lstrip('-').isdigit() else v
    open(outp, 'w').write(gen(opts))
```
